```python
import torch

def _softmax(x, axis=-1):
    return torch.softmax(x, dim=axis)
def _gelu(x):
    return torch.nn.functional.gelu(x, approximate="tanh")
def _silu(x):
    return torch.nn.functional.silu(x)
def _sigmoid(x):
    return torch.sigmoid(x)
def _layernorm(x, axis=-1, eps=1e-5):
    m = x.mean(dim=axis, keepdim=True)
    v = x.var(dim=axis, keepdim=True, unbiased=False)
    return (x - m) / torch.sqrt(v + eps)
def _scatter_add(tgt, idx, src, axis=0):
    return tgt.clone().index_add_(axis, idx, src)
def _segment_sum(src, seg, n):
    out = torch.zeros((n,) + src.shape[1:], dtype=src.dtype)
    return out.index_add_(0, seg, src)
def _pad(x, pw):
    flat = tuple(v for pair in reversed(pw) for v in pair)
    return torch.nn.functional.pad(x, flat)

kernel_name = 'concat_heads__mha_block_cached__mha_block_cached__near_ridge'

def setup_inputs():

    _w = (lambda a: (lambda t: t.to(torch.bfloat16) if t.is_floating_point() else t)(torch.as_tensor(a)))
    def _A_setup():
        B, Sq, D = 8, 240, 512
        H, Sk, Dh = 32, 512, 128
        return {
            "x": _w((lambda *s: torch.randn(*s, dtype=torch.bfloat16) * 0.8)(B, Sq, D)),
            "k_cache": _w((lambda *s: torch.randn(*s, dtype=torch.bfloat16) * 0.8)(B, H, Sk, Dh)),
            "v_cache": _w((lambda *s: torch.randn(*s, dtype=torch.bfloat16) * 0.05)(B, H, Sk, Dh)),
            "wq": _w((lambda *s: torch.randn(*s, dtype=torch.bfloat16) * 0.8)(D, H * Dh) * (D ** -0.5)),
            "wo": _w((lambda *s: torch.randn(*s, dtype=torch.bfloat16) * 0.05)(H * Dh, D) * ((H * Dh) ** -0.5)),
        }
    _A_in = _A_setup()

    def _B_setup():
        B, Sq, D = 8, 240, 512
        H, Sk, Dh = 32, 512, 128
        return {
            "x": _w((lambda *s: torch.randn(*s, dtype=torch.bfloat16) * 0.8)(B, Sq, D)),
            "k_cache": _w((lambda *s: torch.randn(*s, dtype=torch.bfloat16) * 0.8)(B, H, Sk, Dh)),
            "v_cache": _w((lambda *s: torch.randn(*s, dtype=torch.bfloat16) * 0.05)(B, H, Sk, Dh)),
            "wq": _w((lambda *s: torch.randn(*s, dtype=torch.bfloat16) * 0.8)(D, H * Dh) * (D ** -0.5)),
            "wo": _w((lambda *s: torch.randn(*s, dtype=torch.bfloat16) * 0.05)(H * Dh, D) * ((H * Dh) ** -0.5)),
        }
    _B_in = _B_setup()

    return {
        "A_x": _A_in["x"],
        "A_k_cache": _A_in["k_cache"],
        "A_v_cache": _A_in["v_cache"],
        "A_wq": _A_in["wq"],
        "A_wo": _A_in["wo"],
        "B_x": _B_in["x"],
        "B_k_cache": _B_in["k_cache"],
        "B_v_cache": _B_in["v_cache"],
        "B_wq": _B_in["wq"],
        "B_wo": _B_in["wo"],
    }

def reference(A_x, A_k_cache, A_v_cache, A_wq, A_wo, B_x, B_k_cache, B_v_cache, B_wq, B_wo):
    def _A_ref(x, k_cache, v_cache, wq, wo):
        B, Sq, D = x.shape
        H, Dh = 32, 128
        q = (lambda x, *d: x.permute(*d))((x @ wq).reshape(B, Sq, H, Dh), 0, 2, 1, 3)
        scores = torch.einsum("bhqd,bhkd->bhqk", q, k_cache) * (Dh ** -0.5)
        p = _softmax(scores, axis=-1)
        o = torch.einsum("bhqk,bhkd->bhqd", p, v_cache)
        return (lambda x, *d: x.permute(*d))(o, 0, 2, 1, 3).reshape(B, Sq, H * Dh) @ wo

    def _B_ref(x, k_cache, v_cache, wq, wo):
        B, Sq, D = x.shape
        H, Dh = 32, 128
        q = (lambda x, *d: x.permute(*d))((x @ wq).reshape(B, Sq, H, Dh), 0, 2, 1, 3)
        scores = torch.einsum("bhqd,bhkd->bhqk", q, k_cache) * (Dh ** -0.5)
        p = _softmax(scores, axis=-1)
        o = torch.einsum("bhqk,bhkd->bhqd", p, v_cache)
        return (lambda x, *d: x.permute(*d))(o, 0, 2, 1, 3).reshape(B, Sq, H * Dh) @ wo

    a = _A_ref(A_x, A_k_cache, A_v_cache, A_wq, A_wo)
    b = _B_ref(B_x, B_k_cache, B_v_cache, B_wq, B_wo)
    return torch.concatenate([a, b], axis=-1)
```

```python
import re, sys
import numpy as np

U32 = np.uint32
FULL = (1 << 64) - 1
LANES = np.arange(64, dtype=np.int64)

class EmuError(Exception):
    pass

def f32(x):
    return x.view(np.float32)
def u32(x):
    return np.ascontiguousarray(x, dtype=np.float32).view(np.uint32)
def bf16_round(x):
    b = u32(x).astype(np.uint64)
    r = ((b + 0x7FFF + ((b >> 16) & 1)) >> 16).astype(np.uint32) & 0xFFFF
    nan = np.isnan(x)
    if nan.any():
        r = np.where(nan, np.uint32(0x7FC0), r)
    return r.astype(np.uint32)

class Mem:
    def __init__(self):
        self.bufs = []
    def add(self, name, arr):
        base = (len(self.bufs) + 1) << 36
        self.bufs.append((name, base, arr.view(np.uint8).reshape(-1)))
        return base
    def locate(self, addr, n):
        i = (addr >> 36) - 1
        if i < 0 or i >= len(self.bufs):
            raise EmuError("FAULT: address %x not in any buffer" % addr)
        name, base, arr = self.bufs[i]
        off = addr - base
        if off < 0 or off + n > arr.size:
            raise EmuError("FAULT: address %x+%d outside buffer %s" % (addr, n, name))
        return name, arr, off

REG_RE = re.compile(r"^(-?)(abs\()?([vas])(?:(\d+)|\[(\d+):(\d+)\])\)?$")
INL_F = {"0.5": 0.5, "-0.5": -0.5, "1.0": 1.0, "-1.0": -1.0, "2.0": 2.0, "-2.0": -2.0, "4.0": 4.0, "-4.0": -4.0}

class Op:
    __slots__ = ("k", "n", "cnt", "val", "neg", "abs")
    def __init__(self, k, n=0, cnt=1, val=0, neg=False, ab=False):
        self.k = k; self.n = n; self.cnt = cnt; self.val = val; self.neg = neg; self.abs = ab
    def regs(self):
        if self.k == "v": return [("v", self.n + i) for i in range(self.cnt)]
        if self.k == "s": return [("s", self.n + i) for i in range(self.cnt)]
        if self.k in ("vcc", "exec"): return [("s", self.k)]
        if self.k in ("m0",): return [("s", "m0")]
        return []

def parse_op(t):
    t = t.strip()
    m = REG_RE.match(t)
    if m:
        neg, ab, k, n, lo, hi = m.groups()
        if n is not None: lo = hi = int(n)
        else: lo = int(lo); hi = int(hi)
        if k == "a": k = "v"; lo += 256; hi += 256
        return Op(k, lo, hi - lo + 1, neg=bool(neg), ab=bool(ab))
    if t in ("vcc", "exec", "m0", "off", "scc"): return Op(t, cnt=2 if t in ("vcc", "exec") else 1)
    if t in ("vcc_lo", "vcc_hi", "exec_lo", "exec_hi"): return Op(t)
    if t in INL_F: return Op("c", val=int(u32(np.array([INL_F[t]]))[0]))
    try:
        v = int(t, 0)
    except ValueError:
        return Op("lbl", val=t)
    return Op("c", val=v & 0xFFFFFFFF)

class Ins:
    __slots__ = ("op", "ops", "mods", "text", "line", "nochk", "cls", "rd", "wr", "auto", "stamp")

def parse_program(text):
    prog = []; labels = {}
    for ln, raw in enumerate(text.split("\n"), 1):
        line = raw.split(";", 1)
        com = line[1] if len(line) > 1 else ""
        s = line[0].strip()
        if not s or s.startswith("."): continue
        if s.endswith(":"):
            labels[s[:-1]] = len(prog); continue
        parts = s.split(None, 1)
        op = parts[0]; rest = parts[1] if len(parts) > 1 else ""
        I = Ins(); I.op = op; I.text = s; I.line = ln; I.nochk = "nochk" in com; I.mods = {}
        m2_ = re.search(r"stamp=(\S+)", com); I.stamp = m2_.group(1) if m2_ else None
        m_ = re.search(r"auto=(\S+)", com); I.auto = m_.group(1) if m_ else None
        if op == "s_waitcnt":
            for m in re.finditer(r"(vmcnt|lgkmcnt|expcnt)\((\d+)\)", rest): I.mods[m.group(1)] = int(m.group(2))
            I.ops = []
        else:
            toks = []; depth = 0; cur = ""
            for ch in rest:
                if ch in "[(": depth += 1
                if ch in "])": depth -= 1
                if ch == "," and depth == 0: toks.append(cur); cur = ""
                else: cur += ch
            if cur.strip(): toks.append(cur)
            ops = []
            for i, tk in enumerate(toks):
                w = tk.split()
                ops.append(parse_op(w[0]) if not w[0].startswith("hwreg") else Op("c", val=0))
                for md in w[1:]:
                    if ":" in md:
                        a, b = md.split(":", 1)
                        try: I.mods[a] = int(b, 0)
                        except ValueError: I.mods[a] = b
                    else: I.mods[md] = True
            I.ops = ops
        prog.append(I)
    return prog, labels

TRANS = {"v_exp_f32", "v_rcp_f32", "v_log_f32", "v_rsq_f32", "v_sqrt_f32"}

def classify(I):
    op = I.op; o = I.ops
    rd = []; wr = []
    def R(*xs):
        for x in xs: rd.extend(x.regs())
    def W(*xs):
        for x in xs: wr.extend(x.regs())
    if op.startswith("v_mfma"):
        cls = "mfma"; W(o[0]); R(o[1], o[2], o[3])
    elif op.startswith("v_cmp"):
        cls = "valu"; W(o[0]); R(*o[1:])
    elif op.startswith("v_permlane") and "swap" in op:
        cls = "valu"; W(o[0], o[1]); R(o[0], o[1])
    elif op.startswith("v_"):
        cls = "valu"; W(o[0]); R(*o[1:])
        if op in ("v_fmac_f32",): R(o[0])
        if op.startswith("v_cndmask") and len(o) == 3: rd.append(("s", "vcc"))
    elif op.startswith("ds_read"):
        cls = "ds"; W(o[0]); R(o[1])
    elif op.startswith("ds_write"):
        cls = "ds"; R(*o)
    elif op.startswith("buffer_load"):
        cls = "vmem"
        if "lds" in I.mods: R(*o); rd.append(("s", "m0"))
        else: W(o[0]); R(*o[1:])
    elif op.startswith("buffer_store") or op.startswith("global_store") or op.startswith("global_atomic") :
        cls = "vmem"; R(*o)
    elif op.startswith("buffer_wbl2") or op.startswith("buffer_inv"):
        cls = "vmem"
    elif op.startswith("global_load"):
        cls = "vmem"; W(o[0]); R(*o[1:])
    elif op.startswith("s_load") or op in ("s_memtime", "s_memrealtime"):
        cls = "smem"; W(o[0]); R(*o[1:])
    elif op in ("s_waitcnt", "s_barrier", "s_nop", "s_endpgm", "s_setprio", "s_branch") or op.startswith("s_cbranch"):
        cls = "ctl"
    elif op.startswith("s_cmp") or op.startswith("s_bitcmp"):
        cls = "salu"; R(*o)
    elif op.startswith("s_"):
        cls = "salu"; W(o[0]); R(*o[1:])
        if op in ("s_addk_i32",): R(o[0])
        if "saveexec" in op: wr.append(("s", "exec")); rd.append(("s", "exec"))
    else:
        raise EmuError("unknown op %s (line %d)" % (op, I.line))
    I.cls = cls; I.rd = rd; I.wr = wr

class Wave:
    def __init__(self, wg, wid):
        self.wg = wg; self.wid = wid
        self.v = np.full((512, 64), 0x7FC0DEAD, dtype=np.uint32)
        self.s = [0xDEAD0000 + i for i in range(128)]
        self.vcc = 0; self.exec = FULL; self.scc = 0; self.m0 = 0
        self.pc = 0; self.done = False; self.at_barrier = False
        self.vmq = []; self.lgq = []
        self.pend = {}
        self.t = 0
        self.valu_w = {}; self.trans_w = {}; self.mfma_w = {}; self.mfma_c = {}; self.valu_sw = {}; self.store_d = {}
        self.m0_t = -100
        self.nins = 0; self.nmfma = 0
        self.swritten = set()
        self.vm_n = 0; self.lg_n = 0
        self.vm_ev = []; self.lg_ev = []

class WG:
    def __init__(self, prog, labels, mem, kernarg_addr, wgid, nwaves=4, lds_bytes=163840, entry=0, verbose=False):
        self.prog = prog; self.labels = labels; self.mem = mem
        self.lds_bytes = lds_bytes
        n = lds_bytes // 4
        self.lds = np.full(n, 0x7FC1BEEF, dtype=np.uint32)
        self.pend_w = np.zeros(n, dtype=np.int32)
        self.wr_wave = np.full(n, -1, dtype=np.int8)
        self.ready = np.zeros(n, dtype=np.int32)
        self.rd_pend = np.zeros((nwaves, n), dtype=np.int32)
        self.rd_epoch = np.full((nwaves, n), -1, dtype=np.int32)
        self.epoch = 0
        self.solve = None
        self.pw_idx = np.full(n, -1, dtype=np.int32); self.pw_wave = np.full(n, -1, dtype=np.int8); self.pw_kind = np.zeros(n, dtype=np.int8)
        self.pr_idx = np.full((nwaves, n), -1, dtype=np.int32)
        self.waves = []
        self.errors = []; self.maxerr = 30
        self.bank_conf = {}
        self.trace = None; self.stamps = []
        for w in range(nwaves):
            W = Wave(self, w); W.pc = entry
            W.s[0] = kernarg_addr & 0xFFFFFFFF; W.s[1] = kernarg_addr >> 32; W.s[2] = wgid
            W.v[0] = np.arange(64, dtype=np.uint32) + 64 * w
            self.waves.append(W)
        for I in prog:
            classify(I)
    def err(self, W, I, msg):
        key = (I.line, msg.split(":")[0])
        if key in [e[0] for e in self.errors]: return
        self.errors.append((key, "wave%d line %d [%s]: %s" % (W.wid, I.line, I.text, msg)))
        print("EMU-ERR", self.errors[-1][1])
        if len(self.errors) >= self.maxerr: raise EmuError("too many errors")
    def sget(self, W, o, I=None):
        k = o.k
        if k == "c": return o.val
        if k == "s":
            if o.cnt == 1: return W.s[o.n]
            return W.s[o.n] | (W.s[o.n + 1] << 32)
        if k == "vcc": return W.vcc
        if k == "exec": return W.exec
        if k == "m0": return W.m0
        if k == "vcc_lo": return W.vcc & 0xFFFFFFFF
        if k == "exec_lo": return W.exec & 0xFFFFFFFF
        if k == "scc": return W.scc
        raise EmuError("sget %s" % k)
    def sget64(self, W, o):
        if o.k == "c":
            v = o.val
            if v & 0x80000000 and v >= 0xFFFFFFF0: v |= 0xFFFFFFFF00000000
            return v
        return self.sget(W, o)
    def sset(self, W, o, val):
        k = o.k
        if k == "s":
            W.s[o.n] = val & 0xFFFFFFFF
            if o.cnt == 2: W.s[o.n + 1] = (val >> 32) & 0xFFFFFFFF
        elif k == "vcc": W.vcc = val & FULL
        elif k == "exec": W.exec = val & FULL
        elif k == "m0": W.m0 = val & 0xFFFFFFFF; W.m0_t = W.t
        else: raise EmuError("sset %s" % k)
    def vget(self, W, o, i=0):
        if o.k == "v": x = W.v[o.n + i]
        else: x = np.full(64, self.sget(W, o) & 0xFFFFFFFF if not (o.k == "s" and o.cnt == 2) else W.s[o.n + i], dtype=np.uint32)
        return x
    def fget(self, W, o, i=0):
        x = f32(self.vget(W, o, i))
        if o.abs: x = np.abs(x)
        if o.neg: x = -x
        return x
    def vset(self, W, n, val):
        val = np.asarray(val).astype(np.uint32, copy=False)
        if W.exec == FULL: W.v[n] = val
        else:
            m = ((W.exec >> LANES.astype(object)) & 1).astype(bool) if False else self.mask(W.exec)
            W.v[n] = np.where(m, val, W.v[n])
    @staticmethod
    def mask(x):
        return np.array([(x >> i) & 1 for i in range(64)], dtype=bool)
    @staticmethod
    def tomask(b):
        r = 0
        for i in np.nonzero(b)[0]: r |= 1 << int(i)
        return r
    def hazards(self, W, I):
        t = W.t; cls = I.cls
        def need(tab, reg, n, what):
            e = tab.get(reg)
            if e is not None and t - e - 1 < n:
                self.err(W, I, "HAZARD %s: reg %s distance %d < %d" % (what, reg, t - e - 1, n))
        vr = [r for r in I.rd if r[0] == "v"]; vw = [r for r in I.wr if r[0] == "v"]
        sr = [r for r in I.rd if r[0] == "s"]
        for r in I.rd + I.wr:
            if r in W.pend and not I.nochk:
                if self.solve is not None:
                    kd, k = W.pend[r]; self.attribute(W, kd, k, False, I, W)
                if r in W.pend: self.err(W, I, "PENDING %s: reg %s still loading" % (W.pend[r], r))
        if cls == "mfma":
            passes = 8 if "32x32" in I.op else 4
            for r in vr: need(W.valu_w, r, 2, "valu->mfma")
            d0 = I.ops[0]; c = I.ops[3]
            for idx in (1, 2):
                for r in I.ops[idx].regs():
                    e = W.mfma_w.get(r)
                    if e and t - e[0] - 1 < (12 if e[1] == 8 else 8): self.err(W, I, "HAZARD mfmaD->mfmaAB: %s dist %d" % (r, t - e[0] - 1))
            if c.k == "v":
                for r in c.regs():
                    e = W.mfma_w.get(r)
                    if e:
                        exact = (e[2] == c.n and e[3] == c.cnt and e[1] == passes)
                        n = 0 if exact else (10 if e[1] == 8 else 6)
                        if t - e[0] - 1 < n: self.err(W, I, "HAZARD mfmaD->mfmaC overlap: %s dist %d" % (r, t - e[0] - 1))
            for r in d0.regs():
                e = W.mfma_w.get(r)
                if e and not (e[2] == d0.n and e[3] == d0.cnt and e[1] == passes):
                    n = (10 if e[1] == 8 else 6)
                    if t - e[0] - 1 < n: self.err(W, I, "HAZARD mfmaD WAW overlap: %s" % (r,))
            for r in d0.regs(): W.mfma_w[r] = (t, passes, d0.n, d0.cnt)
            if c.k == "v":
                for r in c.regs(): W.mfma_c[r] = (t, passes)
        else:
            if cls in ("valu", "ds", "vmem"):
                lst = vr + vw
                for r in lst:
                    e = W.mfma_w.get(r)
                    if e and t - e[0] - 1 < (12 if e[1] == 8 else 8):
                        self.err(W, I, "HAZARD mfmaD->%s: %s dist %d" % (cls, r, t - e[0] - 1))
            if cls == "valu":
                for r in vw:
                    e = W.mfma_c.get(r)
                    if e and t - e[0] - 1 < (7 if e[1] == 8 else 3): self.err(W, I, "HAZARD mfmaC WAR: %s dist %d" % (r, t - e[0] - 1))
                    need(W.store_d, r, 2, "store data WAR")
                if I.op not in TRANS:
                    for r in vr: need(W.trans_w, r, 1, "trans->use")
                if "permlane" in I.op:
                    for r in vr: need(W.valu_w, r, 2, "valu->permlane")
                if I.op.startswith("v_readfirstlane") or I.op.startswith("v_readlane"):
                    for r in vr: need(W.valu_w, r, 1, "valu->readlane")
                for r in sr: need(W.valu_sw, r, 2, "valu sgpr->valu read")
                for r in vw:
                    W.valu_w[r] = t
                    if I.op in TRANS: W.trans_w[r] = t
                    else: W.trans_w.pop(r, None)
                for r in I.wr:
                    if r[0] == "s": W.valu_sw[r] = t
            if cls == "vmem":
                for r in sr: need(W.valu_sw, r, 5, "valu sgpr->vmem")
                if "lds" in I.mods and t - W.m0_t - 1 < 1: self.err(W, I, "HAZARD m0->dma")
                for r in vw: need(W.store_d, r, 1, "store data WAR(load)")
                if ("store" in I.op) and ("x4" in I.op or "x3" in I.op):
                    d = I.ops[0] if I.op.startswith("buffer") else I.ops[1]
                    for r in d.regs(): W.store_d[r] = t
            if cls == "ds":
                for r in vw: need(W.store_d, r, 1, "store data WAR(ds)")
            if cls in ("salu", "ctl"):
                for r in sr: need(W.valu_sw, r, 4, "valu sgpr->salu (self-imposed)")
                if I.op in ("s_cbranch_vccz", "s_cbranch_vccnz"): need(W.valu_sw, ("s", "vcc"), 4, "valu vcc->branch (self-imposed)")
    def lds_read_check(self, W, I, g):
        if I.nochk: return
        if self.solve is not None: self.solve_pending_writes(W, I, g); self.solve_unseparated(W, I, g)
        if (self.pend_w[g] > 0).any():
            self.err(W, I, "RACE lds read of pending async write: addr %x" % (int(g[self.pend_w[g] > 0][0]) * 4))
        other = (self.wr_wave[g] != W.wid) & (self.wr_wave[g] >= 0)
        bad = other & (self.ready[g] > self.epoch)
        if bad.any(): self.err(W, I, "RACE lds read not barrier-separated from writer: addr %x" % (int(g[bad][0]) * 4))
    def lds_write_check(self, W, I, g):
        if I.nochk: return
        if self.solve is not None:
            self.solve_pending_writes(W, I, g); self.solve_unseparated(W, I, g)
            for w in range(len(self.waves)):
                m = self.rd_pend[w, g] > 0
                if m.any(): self.attribute(self.waves[w], "lg", int(self.pr_idx[w, g[m]].max()), w != W.wid, I, W)
        for w in range(len(self.waves)):
            if (self.rd_pend[w, g] > 0).any(): self.err(W, I, "RACE lds write over pending read by wave %d: addr %x" % (w, int(g[self.rd_pend[w, g] > 0][0]) * 4))
            if w != W.wid and (self.rd_epoch[w, g] >= self.epoch).any():
                self.err(W, I, "RACE lds write WAR vs wave %d read in same epoch: addr %x" % (w, int(g[self.rd_epoch[w, g] >= self.epoch][0]) * 4))
        if (self.pend_w[g] > 0).any(): self.err(W, I, "RACE lds WAW with pending write: addr %x" % (int(g[self.pend_w[g] > 0][0]) * 4))
        other = (self.wr_wave[g] != W.wid) & (self.wr_wave[g] >= 0)
        bad = other & (self.ready[g] > self.epoch)
        if bad.any(): self.err(W, I, "RACE lds WAW not barrier-separated: addr %x" % (int(g[bad][0]) * 4))
    B128_GROUPS = [list(range(0, 4)) + list(range(12, 16)) + list(range(20, 28)), list(range(4, 12)) + list(range(16, 20)) + list(range(28, 32))]
    B128_GROUPS += [[x + 32 for x in B128_GROUPS[0]], [x + 32 for x in B128_GROUPS[1]]]
    def bank_check(self, I, addr, nb):
        groups = self.B128_GROUPS if nb == 16 else ([list(range(32)), list(range(32, 64))] if nb == 8 else None)
        if groups is None: return
        extra = 0
        for g in groups:
            a = addr[g]
            dw = np.unique((a[:, None] // 4 + np.arange(nb // 4)[None, :]).reshape(-1))
            cnt = np.bincount(dw % 64, minlength=64)
            extra += cnt.max() - 1
        if extra: self.bank_conf[I.line] = (I.text, int(extra))
    def push_vm(self, W, e):
        W.vmq.append((W.vm_n, e)); W.vm_n += 1
        if self.solve is None and len(W.vmq) > 63: self.vm_over = max(getattr(self, "vm_over", 0), len(W.vmq))
    def push_lg(self, W, e):
        W.lgq.append((W.lg_n, e)); W.lg_n += 1
    def attribute(self, W, kind, k, cross, I, Wr):
        evs = W.vm_ev if kind == "vm" else W.lg_ev
        for (aid, ep, issued) in reversed(evs):
            if issued <= k: break
            if cross and ep >= self.epoch: continue
            n = issued - k - 1
            self.solve[aid] = min(self.solve.get(aid, 1000), n)
            q = W.vmq if kind == "vm" else W.lgq
            left = sum(1 for (i, _) in q if i > k)
            (self.retire_vm if kind == "vm" else self.retire_lg)(W, left, ep)
            return ep + 1
        self.err(Wr, I, "SOLVE no covering auto wait: %s op %d of wave %d" % (kind, k, W.wid))
        q = W.vmq if kind == "vm" else W.lgq
        (self.retire_vm if kind == "vm" else self.retire_lg)(W, sum(1 for (i, _) in q if i > k), self.epoch - 1)
        return self.epoch
    def solve_pending_writes(self, W, I, g):
        while True:
            m = self.pend_w[g] > 0
            if not m.any(): return
            gg = g[m]
            ww = int(self.pw_wave[gg[0]]); sel = gg[(self.pw_wave[gg] == ww) & (self.pw_kind[gg] == self.pw_kind[gg[0]])]
            k = int(self.pw_idx[sel].max())
            self.attribute(self.waves[ww], "vm" if self.pw_kind[gg[0]] == 0 else "lg", k, ww != W.wid, I, W)
    def solve_unseparated(self, W, I, g):
        while True:
            bad = (self.wr_wave[g] != W.wid) & (self.wr_wave[g] >= 0) & (self.ready[g] > self.epoch)
            if not bad.any(): return
            gg = g[bad]; ww = int(self.wr_wave[gg[0]]); sel = gg[self.wr_wave[gg] == ww]
            k = int(self.pw_idx[sel].max())
            r = self.attribute(self.waves[ww], "vm" if self.pw_kind[sel[0]] == 0 else "lg", k, True, I, W)
            self.ready[sel] = r
    def retire_vm(self, W, n, ep=None):
        if ep is None: ep = self.epoch
        while len(W.vmq) > n:
            e = W.vmq.pop(0)[1]
            if e[0] == "reg":
                _, r0, data, msk = e
                for i in range(data.shape[0]):
                    W.v[r0 + i] = data[i] if msk is None else np.where(msk, data[i], W.v[r0 + i]); W.pend.pop(("v", r0 + i), None)
            elif e[0] == "lds":
                _, g, data = e
                self.lds[g] = data; self.pend_w[g] -= 1; self.wr_wave[g] = W.wid; self.ready[g] = ep + 1
    def retire_lg(self, W, n, ep=None):
        if ep is None: ep = self.epoch
        if n > 0 and any(e[1][0] == "sreg" for e in W.lgq): raise EmuError("counted lgkmcnt with SMEM outstanding")
        while len(W.lgq) > n:
            e = W.lgq.pop(0)[1]
            if e[0] == "reg":
                _, r0, data, g = e
                for i in range(data.shape[0]):
                    W.v[r0 + i] = data[i]; W.pend.pop(("v", r0 + i), None)
                self.rd_pend[W.wid, g] -= 1; self.rd_epoch[W.wid, g] = ep
            elif e[0] == "sreg":
                _, r0, vals = e
                for i, x in enumerate(vals): W.s[r0 + i] = int(x); W.pend.pop(("s", r0 + i), None)
            elif e[0] == "w":
                _, g = e
                self.pend_w[g] -= 1; self.wr_wave[g] = W.wid; self.ready[g] = ep + 1
    def buf_addr(self, W, I, vo, srd, so):
        base = W.s[srd.n] | ((W.s[srd.n + 1] & 0xFFFF) << 32)
        if W.s[srd.n + 1] >> 16: raise EmuError("SRD stride/swizzle bits set: line %d" % I.line)
        if W.s[srd.n + 3] != 0x20000: raise EmuError("SRD word3 %x line %d" % (W.s[srd.n + 3], I.line))
        nrec = W.s[srd.n + 2]
        off = np.full(64, self.sget(W, so) + I.mods.get("offset", 0), dtype=np.int64)
        if "offen" in I.mods: off += W.v[vo.n].astype(np.int64)
        return base, nrec, off
    def gread(self, I, base, nrec, off, ndw, active):
        data = np.zeros((ndw, 64), dtype=np.uint32)
        inr = (off + 4 * ndw <= nrec) & active
        part = (off + 4 <= nrec) & ~inr & active
        if part.any(): raise EmuError("partially OOB access line %d" % I.line)
        if inr.any():
            lo = int(off[inr].min()); hi = int(off[inr].max()) + 4 * ndw
            name, arr, o0 = self.mem.locate(base + lo, hi - lo)
            if ((off[inr] & 3) != 0).any(): raise EmuError("unaligned")
            a32 = arr[: arr.size // 4 * 4].view(np.uint32)
            idx = (off[inr] + (o0 - lo)) // 4
            for i in range(ndw): data[i, inr] = a32[idx + i]
        return data
    def gwrite(self, I, base, nrec, off, data, active):
        ndw = data.shape[0]
        inr = (off + 4 * ndw <= nrec) & active
        if inr.any():
            lo = int(off[inr].min()); hi = int(off[inr].max()) + 4 * ndw
            name, arr, o0 = self.mem.locate(base + lo, hi - lo)
            if name not in ("out", "ws", "dbg"): raise EmuError("store to input buffer %s line %d" % (name, I.line))
            a32 = arr[: arr.size // 4 * 4].view(np.uint32)
            idx = (off[inr] + (o0 - lo)) // 4
            for i in range(ndw): a32[idx + i] = data[i, inr]
    def step(self, W):
        I = self.prog[W.pc]; W.pc += 1
        op = I.op; o = I.ops; cls = I.cls
        self.hazards(W, I)
        W.nins += 1
        if self.trace is not None and W.wid == 0: self.trace.append(I)
        if I.stamp and W.wid == 0: self.stamps.append(I.stamp)
        adv = 1
        if cls == "mfma":
            self.mfma(W, I); W.nmfma += 1
        elif cls == "valu": self.valu(W, I)
        elif cls == "salu": self.salu(W, I)
        elif cls == "ctl":
            if op == "s_waitcnt":
                if self.solve is not None and I.auto:
                    if "vmcnt" in I.mods: W.vm_ev.append((I.auto + ".vm", self.epoch, W.vm_n))
                    if "lgkmcnt" in I.mods: W.lg_ev.append((I.auto + ".lg", self.epoch, W.lg_n))
                else:
                    if "vmcnt" in I.mods: self.retire_vm(W, I.mods["vmcnt"])
                    if "lgkmcnt" in I.mods: self.retire_lg(W, I.mods["lgkmcnt"])
            elif op == "s_nop": adv = o[0].val + 1
            elif op == "s_barrier": W.at_barrier = True
            elif op == "s_endpgm":
                self.retire_vm(W, 0); self.retire_lg(W, 0); W.done = True
            elif op == "s_setprio": pass
            elif op == "s_branch": W.pc = self.labels[o[0].val]
            else:
                c = {"s_cbranch_scc0": W.scc == 0, "s_cbranch_scc1": W.scc == 1, "s_cbranch_vccz": W.vcc == 0, "s_cbranch_vccnz": W.vcc != 0,
                     "s_cbranch_execz": W.exec == 0, "s_cbranch_execnz": W.exec != 0}[op]
                if c: W.pc = self.labels[o[0].val]
        elif cls == "smem":
            if op.startswith("s_load"):
                base = self.sget(W, o[1]); off = self.sget(W, o[2]) if len(o) > 2 else 0
                off += I.mods.get("offset", 0)
                n = o[0].cnt
                name, arr, oo = self.mem.locate(base + off, 4 * n)
                vals = arr[oo: oo + 4 * n].view(np.uint32).copy()
            else: vals = np.array([W.nins, 0], dtype=np.uint32)
            self.push_lg(W, ("sreg", o[0].n, vals))
            for r in I.wr: W.pend[r] = ("lg", W.lg_n - 1)
        elif cls == "ds": self.ds(W, I)
        elif cls == "vmem": self.vmem(W, I)
        W.t += adv
    def mfma(self, W, I):
        o = I.ops
        if W.exec != FULL: raise EmuError("mfma with partial exec")
        def frag(x):
            r = W.v[x.n: x.n + 4]
            h = np.ascontiguousarray(r.T).view(np.uint16).reshape(64, 8)
            return (h.astype(np.uint32) << 16).view(np.float32)
        a = frag(o[1]); b = frag(o[2])
        with np.errstate(all="ignore"):
            if "32x32x16" in I.op:
                A = a.reshape(2, 32, 8).transpose(1, 0, 2).reshape(32, 16)
                B = b.reshape(2, 32, 8).transpose(1, 0, 2).reshape(32, 16)
                D = (A[:, None, :] * B[None, :, :]).sum(-1, dtype=np.float32) if (np.isnan(a).any() or np.isnan(b).any() or np.isinf(a).any() or np.isinf(b).any()) else A @ B.T
                Dm = D.reshape(4, 2, 4, 32).transpose(0, 2, 1, 3).reshape(16, 64)
                n = 16
            else:
                A = a.reshape(4, 16, 8).transpose(1, 0, 2).reshape(16, 32)
                B = b.reshape(4, 16, 8).transpose(1, 0, 2).reshape(16, 32)
                D = (A[:, None, :] * B[None, :, :]).sum(-1, dtype=np.float32)
                Dm = D.reshape(4, 4, 16).transpose(1, 0, 2).reshape(4, 64)
                n = 4
            c = o[3]
            if c.k == "v": C = f32(W.v[c.n: c.n + n])
            else: C = f32(np.full((n, 64), self.sget(W, c), dtype=np.uint32))
            W.v[o[0].n: o[0].n + n] = (Dm + C).astype(np.float32).view(np.uint32)
    def valu(self, W, I):
        op = I.op; o = I.ops
        if op.endswith("_e32") or op.endswith("_e64"): op = op[:-4]
        g = lambda i, j=0: self.vget(W, o[i], j)
        f = lambda i, j=0: self.fget(W, o[i], j)
        d = o[0].n
        with np.errstate(all="ignore"):
            if op == "v_exp_f32": self.vset(W, d, u32(np.exp2(f(1))))
            elif op == "v_add_f32": self.vset(W, d, u32(f(1) + f(2)))
            elif op == "v_cvt_pk_bf16_f32": self.vset(W, d, bf16_round(f(1)) | (bf16_round(f(2)) << 16))
            elif op in ("v_mov_b32", "v_accvgpr_write_b32", "v_accvgpr_read_b32", "v_accvgpr_mov_b32"): self.vset(W, d, g(1).copy())
            elif op == "v_sub_f32": self.vset(W, d, u32(f(1) - f(2)))
            elif op == "v_mul_f32": self.vset(W, d, u32(f(1) * f(2)))
            elif op == "v_fma_f32": self.vset(W, d, u32((f(1).astype(np.float64) * f(2) + f(3)).astype(np.float32)))
            elif op == "v_max_f32": self.vset(W, d, u32(np.fmax(f(1), f(2))))
            elif op == "v_max3_f32": self.vset(W, d, u32(np.fmax(np.fmax(f(1), f(2)), f(3))))
            elif op == "v_rcp_f32": self.vset(W, d, u32(np.float32(1.0) / f(1)))
            elif op == "v_pk_mul_f32":
                r0 = u32(f(1, 0) * f(2, 0)); r1 = u32(f(1, 1) * f(2, 1))
                if I.mods: raise EmuError("pk mods unsupported")
                self.vset(W, d, r0); self.vset(W, d + 1, r1)
            elif op == "v_add_u32": self.vset(W, d, g(1) + g(2))
            elif op == "v_sub_u32": self.vset(W, d, g(1) - g(2))
            elif op == "v_subrev_u32": self.vset(W, d, g(2) - g(1))
            elif op == "v_lshlrev_b32": self.vset(W, d, g(2) << (g(1) & 31))
            elif op == "v_lshrrev_b32": self.vset(W, d, g(2) >> (g(1) & 31))
            elif op == "v_and_b32": self.vset(W, d, g(1) & g(2))
            elif op == "v_or_b32": self.vset(W, d, g(1) | g(2))
            elif op == "v_xor_b32": self.vset(W, d, g(1) ^ g(2))
            elif op == "v_lshl_add_u32": self.vset(W, d, (g(1) << (g(2) & 31)) + g(3))
            elif op == "v_lshl_or_b32": self.vset(W, d, (g(1) << (g(2) & 31)) | g(3))
            elif op == "v_and_or_b32": self.vset(W, d, (g(1) & g(2)) | g(3))
            elif op == "v_add3_u32": self.vset(W, d, g(1) + g(2) + g(3))
            elif op == "v_or3_b32": self.vset(W, d, g(1) | g(2) | g(3))
            elif op == "v_add_lshl_u32": self.vset(W, d, (g(1) + g(2)) << (g(3) & 31))
            elif op == "v_bfe_u32": self.vset(W, d, (g(1) >> (g(2) & 31)) & ((np.uint32(1) << (g(3) & 31)) - np.uint32(1)))
            elif op in ("v_mul_u32_u24",): self.vset(W, d, ((g(1) & 0xFFFFFF).astype(np.uint64) * (g(2) & 0xFFFFFF)).astype(np.uint32))
            elif op == "v_mad_u32_u24": self.vset(W, d, ((g(1) & 0xFFFFFF).astype(np.uint64) * (g(2) & 0xFFFFFF) + g(3)).astype(np.uint32))
            elif op == "v_mul_lo_u32": self.vset(W, d, (g(1).astype(np.uint64) * g(2)).astype(np.uint32))
            elif op == "v_readfirstlane_b32":
                lane = 0 if W.exec else 0
                while W.exec and not (W.exec >> lane) & 1: lane += 1
                self.sset(W, o[0], int(g(1)[lane]))
            elif op == "v_writelane_b32":
                W.v[d][self.sget(W, o[2]) & 63] = self.sget(W, o[1]) & 0xFFFFFFFF
            elif op == "v_permlane32_swap_b32":
                a = W.v[o[0].n].copy(); b = W.v[o[1].n].copy()
                W.v[o[0].n][32:] = b[:32]; W.v[o[1].n][:32] = a[32:]
            elif op == "v_permlane16_swap_b32":
                a = W.v[o[0].n].copy(); b = W.v[o[1].n].copy()
                W.v[o[0].n][16:32] = b[0:16]; W.v[o[0].n][48:64] = b[32:48]
                W.v[o[1].n][0:16] = a[16:32]; W.v[o[1].n][32:48] = a[48:64]
            elif op.startswith("v_cmp_"):
                _, _, cond, ty = op.split("_")
                if ty == "f32":
                    a = f(1); b = f(2)
                    r = {"lt": a < b, "gt": a > b, "le": a <= b, "ge": a >= b, "eq": a == b, "u": np.isnan(a) | np.isnan(b), "o": ~(np.isnan(a) | np.isnan(b)),
                         "nge": ~(a >= b), "nle": ~(a <= b), "nlt": ~(a < b), "ngt": ~(a > b), "neq": ~(a == b), "lg": (a < b) | (a > b)}[cond]
                else:
                    a = g(1); b = g(2)
                    if ty == "i32": a = a.view(np.int32); b = b.view(np.int32)
                    r = {"lt": a < b, "gt": a > b, "le": a <= b, "ge": a >= b, "eq": a == b, "ne": a != b}[cond]
                self.sset(W, o[0], self.tomask(r) & W.exec)
            elif op == "v_cndmask_b32":
                m = self.mask(W.vcc if len(o) == 3 else self.sget(W, o[3]))
                self.vset(W, d, np.where(m, g(2), g(1)))
            else: raise EmuError("valu op %s" % op)
    def salu(self, W, I):
        op = I.op; o = I.ops
        S = lambda i: self.sget(W, o[i])
        S64 = lambda i: self.sget64(W, o[i])
        def sgn(x): return x - (1 << 32) if x & 0x80000000 else x
        if op == "s_mov_b32": self.sset(W, o[0], S(1))
        elif op == "s_mov_b64": self.sset(W, o[0], S64(1))
        elif op == "s_add_u32": r = S(1) + S(2); W.scc = r >> 32; self.sset(W, o[0], r)
        elif op == "s_addc_u32": r = S(1) + S(2) + W.scc; W.scc = r >> 32; self.sset(W, o[0], r)
        elif op == "s_add_i32": r = S(1) + S(2); self.sset(W, o[0], r); W.scc = 0
        elif op == "s_addk_i32": r = S(0) + sgn(S(1) if S(1) & 0x80000000 else (S(1) if S(1) < 0x8000 else S(1) - 0x10000)); self.sset(W, o[0], r)
        elif op == "s_sub_u32": r = S(1) - S(2); W.scc = 1 if r < 0 else 0; self.sset(W, o[0], r)
        elif op == "s_sub_i32": r = S(1) - S(2); self.sset(W, o[0], r); W.scc = 0
        elif op == "s_mul_i32": self.sset(W, o[0], S(1) * S(2))
        elif op == "s_lshl_b32": r = (S(1) << (S(2) & 31)) & 0xFFFFFFFF; W.scc = int(r != 0); self.sset(W, o[0], r)
        elif op == "s_lshr_b32": r = S(1) >> (S(2) & 31); W.scc = int(r != 0); self.sset(W, o[0], r)
        elif op == "s_lshl_b64": r = (S64(1) << (S(2) & 63)) & FULL; W.scc = int(r != 0); self.sset(W, o[0], r)
        elif op == "s_and_b32": r = S(1) & S(2); W.scc = int(r != 0); self.sset(W, o[0], r)
        elif op == "s_or_b32": r = S(1) | S(2); W.scc = int(r != 0); self.sset(W, o[0], r)
        elif op == "s_xor_b32": r = S(1) ^ S(2); W.scc = int(r != 0); self.sset(W, o[0], r)
        elif op == "s_and_b64": r = S64(1) & S64(2); W.scc = int(r != 0); self.sset(W, o[0], r)
        elif op == "s_or_b64": r = S64(1) | S64(2); W.scc = int(r != 0); self.sset(W, o[0], r)
        elif op == "s_xor_b64": r = S64(1) ^ S64(2); W.scc = int(r != 0); self.sset(W, o[0], r)
        elif op == "s_andn2_b64": r = S64(1) & ~S64(2) & FULL; W.scc = int(r != 0); self.sset(W, o[0], r)
        elif op == "s_bfe_u32": x = S(2); r = (S(1) >> (x & 31)) & ((1 << ((x >> 16) & 127)) - 1); W.scc = int(r != 0); self.sset(W, o[0], r)
        elif op == "s_cselect_b32": self.sset(W, o[0], S(1) if W.scc else S(2))
        elif op == "s_cselect_b64": self.sset(W, o[0], S64(1) if W.scc else S64(2))
        elif op == "s_and_saveexec_b64": old = W.exec; W.exec = S64(1) & old; self.sset(W, o[0], old); W.scc = int(W.exec != 0)
        elif op == "s_getreg_b32": self.sset(W, o[0], 0)
        elif op.startswith("s_cmp_"):
            _, _, cond, ty = op.split("_")
            if ty == "u64": a = S64(0); b = S64(1)
            else:
                a = S(0); b = S(1)
                if ty == "i32": a = sgn(a); b = sgn(b)
            W.scc = int({"eq": a == b, "lg": a != b, "lt": a < b, "le": a <= b, "gt": a > b, "ge": a >= b}[cond])
        elif op == "s_bitcmp1_b32": W.scc = (S(0) >> (S(1) & 31)) & 1
        elif op == "s_bitcmp0_b32": W.scc = 1 - ((S(0) >> (S(1) & 31)) & 1)
        else: raise EmuError("salu op %s" % op)
    def ds(self, W, I):
        op = I.op; o = I.ops
        if W.exec != FULL and "tr" in op: raise EmuError("tr read with partial exec")
        off = I.mods.get("offset", 0)
        if op.startswith("ds_read"):
            addr = W.v[o[1].n].astype(np.int64) + off
            nb = {"ds_read_b128": 16, "ds_read_b64_tr_b16": 8, "ds_read_b64": 8, "ds_read_b32": 4}[op]
            if (addr + nb > self.lds_bytes).any() or (addr % min(nb, 8)).any(): raise EmuError("ds addr out of range/unaligned line %d: %x" % (I.line, addr.max()))
            if nb == 16 and (addr % 16).any(): raise EmuError("b128 unaligned")
            g = (addr[:, None] // 4 + np.arange(nb // 4)[None, :])
            gf = g.reshape(-1)
            self.lds_read_check(W, I, gf); self.bank_check(I, addr, nb)
            data = self.lds[g]
            if op == "ds_read_b64_tr_b16":
                h = np.ascontiguousarray(data).view(np.uint16).reshape(4, 4, 4, 4)
                res = h.transpose(0, 2, 3, 1).reshape(64, 4)
                data = np.ascontiguousarray(res).view(np.uint32).reshape(64, 2)
            gu = np.unique(gf)
            self.rd_pend[W.wid, gu] += 1
            self.pr_idx[W.wid, gu] = W.lg_n
            for r in I.wr: W.pend[r] = ("lg", W.lg_n)
            self.push_lg(W, ("reg", o[0].n, np.ascontiguousarray(data.T), gu))
        else:
            addr = W.v[o[0].n].astype(np.int64) + off
            n = o[1].cnt
            act = self.mask(W.exec)
            g = (addr[act][:, None] // 4 + np.arange(n)[None, :])
            if (g * 4 + 4 > self.lds_bytes).any(): raise EmuError("ds write out of range")
            gf = g.reshape(-1); gu = np.unique(gf)
            self.lds_write_check(W, I, gu)
            self.lds[g] = W.v[o[1].n: o[1].n + n].T[act]
            self.pend_w[gu] += 1
            self.pw_idx[gu] = W.lg_n; self.pw_wave[gu] = W.wid; self.pw_kind[gu] = 1
            self.push_lg(W, ("w", gu))
    def vmem(self, W, I):
        op = I.op; o = I.ops
        act = self.mask(W.exec) if W.exec != FULL else np.ones(64, dtype=bool)
        if op.startswith("buffer_wbl2") or op.startswith("buffer_inv"):
            self.push_vm(W, ("st",)); return
        ndw = {"dword": 1, "dwordx2": 2, "dwordx3": 3, "dwordx4": 4}[op.split("_")[-1]]
        if op.startswith("buffer_load"):
            if "lds" in I.mods:
                base, nrec, off = self.buf_addr(W, I, o[0], o[1], o[2])
                data = self.gread(I, base, nrec, off, ndw, act)
                la = (W.m0 & 0x3FFFC) + I.mods.get("offset", 0) + LANES * (4 * ndw)
                ok = la + 4 * ndw <= self.lds_bytes
                if not ok.all():
                    if ok.any(): raise EmuError("partially dropped DMA line %d" % I.line)
                    self.push_vm(W, ("st",)); return
                g = (la[:, None] // 4 + np.arange(ndw)[None, :]).reshape(-1)
                self.lds_write_check(W, I, g)
                self.pend_w[g] += 1
                self.pw_idx[g] = W.vm_n; self.pw_wave[g] = W.wid; self.pw_kind[g] = 0
                self.push_vm(W, ("lds", g, np.ascontiguousarray(data.T).reshape(-1)))
            else:
                base, nrec, off = self.buf_addr(W, I, o[1], o[2], o[3])
                data = self.gread(I, base, nrec, off, ndw, act)
                for r in I.wr: W.pend[r] = ("vm", W.vm_n)
                self.push_vm(W, ("reg", o[0].n, data, None if act.all() else act))
        elif op.startswith("buffer_store"):
            base, nrec, off = self.buf_addr(W, I, o[1], o[2], o[3])
            self.gwrite(I, base, nrec, off, W.v[o[0].n: o[0].n + ndw].copy(), act)
            self.push_vm(W, ("st",))
        elif op.startswith("global_store"):
            if o[2].k == "s":
                base = self.sget(W, o[2]); off = W.v[o[0].n].astype(np.int64) + I.mods.get("offset", 0)
            else: raise EmuError("global_store off-form unsupported")
            self.gwrite(I, base, 1 << 40, off, W.v[o[1].n: o[1].n + ndw].copy(), act)
            self.push_vm(W, ("st",))
        elif op.startswith("global_load"):
            base = self.sget(W, o[2]); off = W.v[o[1].n].astype(np.int64) + I.mods.get("offset", 0)
            data = self.gread(I, base, 1 << 40, off, ndw, act)
            for r in I.wr: W.pend[r] = ("vm", W.vm_n)
            self.push_vm(W, ("reg", o[0].n, data, None if act.all() else act))
        else: raise EmuError("vmem op %s" % op)
    def run(self, maxins=10_000_000):
        n = 0
        while True:
            alive = [W for W in self.waves if not W.done]
            if not alive: break
            for W in alive:
                while not W.done and not W.at_barrier:
                    try:
                        self.step(W)
                    except EmuError:
                        I = self.prog[W.pc - 1]
                        print("while executing wave %d line %d: %s" % (W.wid, I.line, I.text)); raise
                    n += 1
                    if n > maxins: raise EmuError("instruction limit")
            alive = [W for W in self.waves if not W.done]
            if alive and all(W.at_barrier for W in alive):
                if len(alive) != len(self.waves) and any(W.at_barrier for W in alive):
                    pass
                for W in alive: W.at_barrier = False
                self.epoch += 1
        return n
```

```python
import sys, json, os
NAME = "concat_heads__mha_block_cached__mha_block_cached__near_ridge"

class Em:
    def __init__(self, solved=None, opts=None):
        self.lines = []; self.solved = solved if solved is not None else {}
        self.o = opts or {}
        self.uid = 0
    def __call__(self, s):
        for l in s.split("\n"): self.lines.append(l)
    def all(self, lst):
        for l in lst: self(l)
    def wait(self, name, vm=False, lg=False):
        p = []
        if vm: p.append("vmcnt(%d)" % min(63, self.solved.get(name + ".vm", 63)))
        if lg: p.append("lgkmcnt(%d)" % min(15, self.solved.get(name + ".lg", 15)))
        return "s_waitcnt %s ; auto=%s" % (" ".join(p), name)
    def text(self): return "\n".join(self.lines) + "\n"

def weave(e, mf, gaps):
    assert len(mf) == len(gaps)
    ab = e.o.get("ablate", "")
    ph = getattr(e, "phase", "")
    def keep(x):
        if ph not in ab.split("+") and not any(t.startswith(ph + ":") for t in ab.split("+")): return True
        for t in ab.split("+"):
            if not t.startswith(ph + ":"): continue
            k = t.split(":")[1]
            if k == "dma" and x.startswith("buffer_load") and " lds" in x: return False
            if k == "lds" and x.startswith("ds_read"): return False
            if k == "sm" and (x.startswith("v_exp") or x.startswith("v_add_f32") or x.startswith("v_cvt_pk")): return False
            if k == "xor" and x.startswith("v_xor"): return False
        return True
    for m, g in zip(mf, gaps):
        e(m); e.all([x for x in g if keep(x)])

def v(n, c=1): return "v%d" % n if c == 1 else "v[%d:%d]" % (n, n + c - 1)
def a(n, c=1): return "a%d" % n if c == 1 else "a[%d:%d]" % (n, n + c - 1)
def s(n, c=1): return "s%d" % n if c == 1 else "s[%d:%d]" % (n, n + c - 1)
MF32 = "v_mfma_f32_32x32x16_bf16"
MF16 = "v_mfma_f32_16x16x32_bf16"

vKA = 2
vVA = 10
vWA = 14
vXA = 18
vKD = 22
vVD = 24
vWD = 25
vXD = 29
vST = 33
vL0, vL1 = 34, 35
vT = 36
vS0, vS1, vP0, vP1, vC0, vC1 = 48, 64, 80, 88, 96, 112
vO = 128
def Ot(t4, t): return vO + (t4 * 2 + t) * 16
aQ, aK, aV, aX, aZ = 0, 64, 96, 128, 252
def Qf(ks, t): return aQ + (ks * 2 + t) * 4
def Kf(ks): return aK + 4 * ks
def Wf(st, dt): return aK + 16 * st + 4 * dt
def Vf(u, t4): return aV + (u * 4 + t4) * 4
def Xf(st, ks, t): return aX + 32 * st + (ks * 2 + t) * 4
ZB = a(aZ, 4)
sX, sW, sK, sV, sO = 4, 8, 12, 16, 20
sWv = 24
sMode = 25
sHead = 26
sKm0, sKm1, sVm0, sVm1 = 27, 28, 29, 30
sWm, sXm = 31, 32
sG, sGp, sD = 33, 34, 35
sKso, sVso = 58, 59
sCnt = 60
sBey = 61
sT0, sT1, sT2, sT3 = 62, 63, 64, 65
sWso, sXso0, sXso1 = 66, 67, 68
sGq, sDq, sKq0, sKq1, sKqso = 69, 70, 71, 72, 73
sBad = 74
sXm2 = 76
sOso = 77
sHp = 78
sVlim = 79
sXe0, sXe1, sXem = 80, 81, 82
LK, LV, LW, LEND = 0, 65536, 131072, 163840
OOB = 0x40000000
CSCALE = 0.12751743

def f2u(x):
    import struct
    return struct.unpack("<I", struct.pack("<f", x))[0]

def zero_mfma(reg, agpr=False):
    return "%s %s, %s, %s, 0" % (MF32, (a if agpr else v)(reg, 16), ZB, ZB)

POL = {}
def pol(srd):
    p = POL.get(srd, "")
    return (" " + p.replace("_", " ")) if p else ""
def dma(vo, srd, so, off=0, nt=False):
    return "buffer_load_dwordx4 %s, %s, %s offen%s%s lds" % (v(vo), s(srd, 4), s(so) if isinstance(so, int) else so, " offset:%d" % off if off else "", pol(srd))

STAMP_OFF = 0x8000000
def stamp(e, name, lvl=1):
    if e.o.get("stamps", 0) < lvl: return
    e("s_memtime s[98:99]")
    e("s_waitcnt lgkmcnt(0)")
    e("s_mov_b32 m0, s97")
    e("v_writelane_b32 v1, s98, m0 ; stamp=%s" % name)
    e("s_add_u32 s97, s97, 1")
def stamp_entry(e):
    if not e.o.get("stamps"): return
    e("s_memtime s[98:99]")
    e("s_memrealtime s[100:101]")
    e("s_waitcnt lgkmcnt(0)")
    e("s_mov_b32 s97, 2")
    e("v_mov_b32 v1, 0")
    e("s_mov_b32 s96, s100")
    e("v_writelane_b32 v1, s98, 0")
def stamp_write(e, wsreg):
    if not e.o.get("stamps"): return
    stamp(e, "end")
    e("s_memrealtime s[100:101]")
    e("s_waitcnt lgkmcnt(0)")
    e("s_sub_u32 s100, s100, s96")
    e("v_writelane_b32 v1, s100, 1")
    e("v_writelane_b32 v1, s96, 63")
    e("v_lshlrev_b32 v2, 2, v0")
    e("s_lshl_b32 s3, s2, 10")
    e("s_add_u32 s3, s3, 0x%x" % STAMP_OFF)
    e("v_add_u32 v2, s3, v2")
    e("global_store_dword v2, v1, %s" % s(wsreg, 2))
    e("s_waitcnt vmcnt(0)")

def k1_init(e):
    o = e.o
    e("s_cmp_ge_u32 s2, 256")
    e("s_cbranch_scc1 L1_end")
    stamp_entry(e)
    e("s_mov_b32 %s, 0" % s(sMode))
    e("L1_again:")
    e("s_load_dwordx16 s[36:51], s[0:1], 0")
    e("s_load_dwordx4 s[52:55], s[0:1], 64")
    e("s_load_dwordx2 s[56:57], s[0:1], 96")
    l, g, i, t0, t1, t2 = vT, vT + 1, vT + 2, vT + 3, vT + 4, vT + 5
    e("v_and_b32 %s, 63, v0" % v(l))
    e("v_lshrrev_b32 %s, 6, v0" % v(t0))
    e("v_lshrrev_b32 %s, 4, %s" % (v(g), v(l)))
    e("v_readfirstlane_b32 %s, %s" % (s(sWv), v(t0)))
    e("v_and_b32 %s, 15, %s" % (v(i), v(l)))
    e("s_lshr_b32 s3, s2, 3")
    e("s_and_b32 %s, s3, 3" % s(sT0))
    e("s_and_b32 %s, s2, 1" % s(sT1))
    e("s_lshl_b32 %s, %s, 2" % (s(sT1), s(sT1)))
    e("s_add_u32 %s, %s, %s" % (s(sT0), s(sT0), s(sT1)))
    e("s_lshr_b32 %s, s3, 2" % s(sT1))
    e("s_and_b32 %s, s2, 2" % s(sT2))
    e("s_lshl_b32 %s, %s, 2" % (s(sT2), s(sT2)))
    e("s_add_u32 %s, %s, %s" % (s(sHp), s(sT1), s(sT2)))
    e("s_lshl_b32 %s, %s, 11" % (s(sKm0), s(sWv)))
    e("s_add_u32 %s, %s, 8192" % (s(sKm1), s(sKm0)))
    e("s_add_u32 %s, %s, %d" % (s(sVm1), s(sKm0), LV))
    e("s_add_u32 %s, %s, 8192" % (s(sVm0), s(sVm1)))
    e("s_lshl_b32 %s, %s, 12" % (s(sWm), s(sWv)))
    e("s_add_u32 %s, %s, %d" % (s(sWm), s(sWm), LW))
    e("s_lshl_b32 %s, %s, 13" % (s(sXm), s(sWv)))
    e("s_add_u32 %s, %s, %d" % (s(sXm), s(sXm), LV))
    e("s_mov_b32 %s, %d" % (s(sBey), LEND))
    e("v_lshlrev_b32 %s, 2, %s" % (v(t0), v(g)))
    e("v_xor_b32 %s, %s, %s" % (v(t0), v(i), v(t0)))
    e("v_lshlrev_b32 %s, 4, %s" % (v(t0), v(t0)))
    e("s_lshl_b32 %s, %s, 17" % (s(sT1), s(sWv)))
    e("v_lshl_add_u32 %s, %s, 13, %s" % (v(t1), v(g), v(t0)))
    e("v_add_u32 %s, %s, %s" % (v(vWD), s(sT1), v(t1)))
    for n in range(1, 4): e("v_add_u32 %s, %d, %s" % (v(vWD + n), n * (32768 - 1024), v(vWD)))
    e("v_lshl_add_u32 %s, %s, 8, %s" % (v(t1), v(g), v(t0)))
    e("v_add_u32 %s, %s, %s" % (v(vVD), s(sKm0), v(t1)))
    e("v_and_b32 %s, 7, %s" % (v(t0), v(l)))
    e("v_xor_b32 %s, %s, %s" % (v(t0), v(t0), v(g)))
    e("v_lshlrev_b32 %s, 4, %s" % (v(t0), v(t0)))
    e("v_lshrrev_b32 %s, 3, %s" % (v(t1), v(l)))
    e("v_lshl_add_u32 %s, %s, 10, %s" % (v(t1), v(t1), v(t0)))
    e("s_lshl_b32 %s, %s, 16" % (s(sT1), s(sWv)))
    e("v_add_u32 %s, %s, %s" % (v(vXD), s(sT1), v(t1)))
    e("v_xor_b32 %s, 64, %s" % (v(t2), v(vXD)))
    e("v_add_u32 %s, %d, %s" % (v(vXD + 1), 7168, v(t2)))
    e("v_add_u32 %s, %d, %s" % (v(vXD + 2), 2 * 7168, v(vXD)))
    e("v_add_u32 %s, %d, %s" % (v(vXD + 3), 3 * 7168, v(t2)))
    e("s_waitcnt lgkmcnt(0)")
    e("s_bitcmp1_b32 s2, 2")
    e("s_cselect_b64 s[36:37], s[46:47], s[36:37]")
    e("s_cselect_b64 s[38:39], s[48:49], s[38:39]")
    e("s_cselect_b64 s[40:41], s[50:51], s[40:41]")
    e("s_cselect_b64 s[42:43], s[52:53], s[42:43]")
    e("s_cselect_b32 %s, 8, 0" % s(sT3))
    e("s_lshl_b32 %s, %s, 9" % (s(sT1), s(sHp)))
    e("s_add_u32 %s, s42, %s" % (s(sW), s(sT1)))
    e("s_addc_u32 %s, s43, 0" % s(sW + 1))
    e("s_sub_u32 %s, %d, %s" % (s(sW + 2), 512 * 8192, s(sT1)))
    e("s_mov_b32 %s, 0x20000" % s(sW + 3))
    e("s_mul_i32 %s, %s, 245760" % (s(sT1), s(sT0)))
    e("s_add_u32 %s, s36, %s" % (s(sX), s(sT1)))
    e("s_addc_u32 %s, s37, 0" % s(sX + 1))
    e("s_mov_b32 %s, 245760" % s(sX + 2))
    e("s_mov_b32 %s, 0x20000" % s(sX + 3))
    e("s_mov_b32 %s, 0" % s(sWso))
    e("s_mov_b32 m0, %s" % s(sWm))
    e("s_mov_b32 %s, 0" % s(sXso0))
    for n in range(4): e(dma(vWD + n, sW, sWso, n * 1024))
    e("s_mov_b32 %s, 32768" % s(sXso1))
    for u in range(2):
        for m in range(2):
            e("s_add_u32 m0, %s, %d" % (s(sXm), u * 32768 + m * 4096))
            e("s_add_u32 %s, %s, %d" % (s(sT1), s(sXso0 + m), u * 128))
            for n in range(4): e(dma(vXD + n, sX, sT1, n * 1024))
    e("s_add_u32 m0, %s, 16384" % s(sWm))
    e("s_mov_b32 %s, 524288" % s(sWso))
    for n in range(4): e(dma(vWD + n, sW, sWso, n * 1024))
    e("s_lshl_b32 %s, %s, 5" % (s(sT1), s(sT0)))
    e("s_lshl_b32 %s, %s, 1" % (s(sT2), s(sHp)))
    e("s_add_u32 %s, %s, %s" % (s(sT1), s(sT1), s(sT2)))
    e("s_lshl_b32 %s, %s, 17" % (s(sT1), s(sT1)))
    e("s_add_u32 %s, s38, %s" % (s(sK), s(sT1)))
    e("s_addc_u32 %s, s39, 0" % s(sK + 1))
    e("s_mov_b32 %s, 262144" % s(sK + 2))
    e("s_mov_b32 %s, 0x20000" % s(sK + 3))
    e("s_add_u32 %s, s40, %s" % (s(sV), s(sT1)))
    e("s_addc_u32 %s, s41, 0" % s(sV + 1))
    e("s_mov_b32 %s, 131072" % s(sV + 2))
    e("s_mov_b32 %s, 0x20000" % s(sV + 3))
    e("s_add_u32 %s, %s, %s" % (s(sT1), s(sT3), s(sT0)))
    e("s_lshl_b32 %s, %s, 21" % (s(sT1), s(sT1)))
    e("s_add_u32 %s, s56, %s" % (s(sO), s(sT1)))
    e("s_addc_u32 %s, s57, 0" % s(sO + 1))
    e("s_mov_b32 %s, 2097152" % s(sO + 2))
    e("s_mov_b32 %s, 0x20000" % s(sO + 3))
    if o.get("warm", 1):
        e("v_lshlrev_b32 %s, 10, %s" % (v(t0), v(l)))
        e("s_lshl_b32 %s, %s, 16" % (s(sT1), s(sWv)))
        for n in range(3, 8): e("buffer_load_dword %s, %s, %s, %s offen offset:%d%s ; nochk" % (v(vS0 + n), v(t0), s(sX, 4), s(sT1), n * 128, pol(sX)))
        e("v_lshrrev_b32 %s, 1, %s" % (v(t1), v(l)))
        e("v_and_b32 %s, 1, %s" % (v(t2), v(l)))
        e("v_lshlrev_b32 %s, 7, %s" % (v(t2), v(t2)))
        e("v_lshl_add_u32 %s, %s, 13, %s" % (v(vT + 6), v(t1), v(t2)))
        e("s_mul_i32 %s, %s, %d" % (s(sT1), s(sWv), 96 * 8192))
        for n in range(3):
            e("s_add_u32 %s, %s, %d" % (s(sT2), s(sT1), (128 + 32 * n) * 8192))
            e("buffer_load_dword %s, %s, %s, %s offen%s ; nochk" % (v(vS0 + 8 + n), v(vT + 6), s(sW, 4), s(sT2), pol(sW)))
    e("s_and_b32 %s, %s, 1" % (s(sT1), s(sWv)))
    e("s_lshl_b32 %s, %s, 3" % (s(sT1), s(sT1)))
    e("v_or_b32 %s, %s, %s" % (v(t0), s(sT1), v(g)))
    e("v_xor_b32 %s, %s, %s" % (v(t0), v(i), v(t0)))
    e("v_lshlrev_b32 %s, 4, %s" % (v(t0), v(t0)))
    e("v_lshl_add_u32 %s, %s, 8, %s" % (v(t0), v(g), v(t0)))
    e("v_add_u32 %s, %s, %s" % (v(vKD), s(sKm0), v(t0)))
    e("v_xor_b32 %s, 64, %s" % (v(vKD + 1), v(vKD)))
    e("v_and_b32 %s, 0x13, %s" % (v(t0), v(l)))
    e("v_and_b32 %s, 4, %s" % (v(t1), v(l)))
    e("v_lshl_or_b32 %s, %s, 1, %s" % (v(t0), v(t1), v(t0)))
    e("v_and_b32 %s, 8, %s" % (v(t1), v(l)))
    e("v_lshrrev_b32 %s, 1, %s" % (v(t1), v(t1)))
    e("v_or_b32 %s, %s, %s" % (v(t0), v(t0), v(t1)))
    e("v_and_b32 %s, 15, %s" % (v(t1), v(t0)))
    e("v_lshrrev_b32 %s, 5, %s" % (v(t2), v(l)))
    e("v_xor_b32 %s, %s, %s" % (v(t1), v(t1), v(t2)))
    e("v_lshlrev_b32 %s, 4, %s" % (v(t1), v(t1)))
    e("v_lshl_or_b32 %s, %s, 8, %s" % (v(vKA), v(t0), v(t1)))
    for ks in range(1, 8): e("v_xor_b32 %s, %d, %s" % (v(vKA + ks), ks << 5, v(vKA)))
    e("v_bfe_u32 %s, %s, 2, 2" % (v(t0), v(l)))
    e("v_lshl_add_u32 %s, %s, 3, %s" % (v(t1), v(t2), v(t0)))
    e("v_lshlrev_b32 %s, 8, %s" % (v(t1), v(t1)))
    e("v_lshl_or_b32 %s, %s, 6, %s" % (v(t1), v(t0), v(t1)))
    e("v_bfe_u32 %s, %s, 4, 1" % (v(t0), v(l)))
    e("v_lshl_or_b32 %s, %s, 5, %s" % (v(t1), v(t0), v(t1)))
    e("v_and_b32 %s, 1, %s" % (v(t0), v(l)))
    e("v_lshl_or_b32 %s, %s, 4, %s" % (v(t1), v(t0), v(t1)))
    e("v_bfe_u32 %s, %s, 1, 1" % (v(t0), v(l)))
    e("v_lshl_or_b32 %s, %s, 3, %s" % (v(t1), v(t0), v(t1)))
    e("v_add_u32 %s, %d, %s" % (v(vVA), LV, v(t1)))
    e("v_add_u32 %s, %d, %s" % (v(vWA), LW, v(t1)))
    for t in range(1, 4):
        e("v_xor_b32 %s, %d, %s" % (v(vVA + t), t << 6, v(vVA)))
        e("v_xor_b32 %s, %d, %s" % (v(vWA + t), t << 6, v(vWA)))
    e("v_bfe_u32 %s, %s, 1, 3" % (v(t0), v(l)))
    e("v_xor_b32 %s, %s, %s" % (v(t0), v(t0), v(t2)))
    e("v_lshlrev_b32 %s, 4, %s" % (v(t0), v(t0)))
    e("v_and_b32 %s, 31, %s" % (v(t1), v(l)))
    e("v_lshl_or_b32 %s, %s, 7, %s" % (v(t0), v(t1), v(t0)))
    e("v_add_u32 %s, %s, %s" % (v(vXA), s(sXm), v(t0)))
    for ks in range(1, 4): e("v_xor_b32 %s, %d, %s" % (v(vXA + ks), ks << 5, v(vXA)))
    e("v_lshlrev_b32 %s, 4, %s" % (v(vST), v(l)))
    for k in range(4): e("v_accvgpr_write_b32 %s, 0" % a(aZ + k))
    e("s_mov_b32 %s, 0" % s(sHead))
    e("s_mov_b64 %s, 0" % s(sBad, 2))
    for t in range(8): e(zero_mfma(vO + 16 * t))
    e(zero_mfma(vC0)); e(zero_mfma(vC1))
    e("s_mov_b32 %s, %s" % (s(sKq0), s(sKm0)))
    e("s_mov_b32 %s, %s" % (s(sKq1), s(sKm1)))
    e("s_mov_b32 %s, 0" % s(sKqso))
    e(e.wait("init_x0", vm=True))

def w_reads(buf, ks, st):
    r = []
    for dt in range(4):
        r.append(["ds_read_b64_tr_b16 %s, %s offset:%d" % (a(Wf(st, dt) + 2 * i2, 2), v(vWA + dt), buf * 16384 + ks * 4096 + i2 * 1024) for i2 in range(2)])
    return r

def x_reads(buf, st):
    r = []
    for ks in range(4):
        for t in range(2):
            r.append("ds_read_b128 %s, %s offset:%d" % (a(Xf(st, ks, t), 4), v(vXA + ks), buf * 32768 + t * 4096))
    return r

def x_dmas(buf):
    g = []
    for m in range(2):
        pre = ["s_add_u32 m0, %s, %d" % (s(sXm), buf * 32768 + m * 4096)]
        d = [dma(vXD + n, sX, sXso0 + m, n * 1024) for n in range(4)]
        g.append(pre + ["s_nop 0", d[0], d[1]] if False else (pre, d))
    return g

def q_unit(e, u, kind):
    p = u & 1
    tag = "q%s" % kind["tag"]
    stamp(e, "u" + kind["tag"], 2)
    for ks in range(4):
        st = ks & 1
        mf = ["%s %s, %s, %s, %s" % (MF32, v(Ot(j >> 1, j & 1), 16), a(Wf(st, j >> 1), 4), a(Xf(p, ks, j & 1), 4), v(Ot(j >> 1, j & 1), 16)) for j in range(8)]
        gaps = [[] for _ in range(8)]
        pre = []
        if ks == 3:
            pre = [e.wait(tag + "k3", vm=True, lg=True), "s_barrier"]
            if "q:bar" in e.o.get("ablate", ""): pre = pre[:1]
        else:
            pre = [e.wait(tag + "k%d" % ks, lg=True)]
        if ks < 3: wr = w_reads(p, ks + 1, st ^ 1)
        elif kind.get("wnext", True): wr = w_reads(p ^ 1, 0, st ^ 1)
        else: wr = None
        if wr:
            for dt in range(4): gaps[dt] += wr[dt]
        if ks == 0 and kind.get("kpair"):
            gaps[3] += ["s_add_u32 m0, %s, %s" % (s(sGq), s(sKq0))]
            gaps[4] += [dma(vKD, sK, sKqso, 0, nt=True), "s_add_u32 %s, %s, 8192" % (s(sT0), s(sKqso))]
            gaps[5] += [dma(vKD + 1, sK, sKqso, 1024, nt=True), "s_add_u32 m0, %s, %s" % (s(sGq), s(sKq1))]
            gaps[6] += ["s_add_u32 %s, %s, 16384" % (s(sKqso), s(sKqso)), dma(vKD, sK, sT0, 0, nt=True), "s_xor_b32 %s, %s, %s" % (s(sGq), s(sGq), s(sDq))]
            gaps[7] += [dma(vKD + 1, sK, sT0, 1024, nt=True), "s_xor_b32 %s, %s, 49152" % (s(sDq), s(sDq))]
        if ks == 1 and kind.get("xread", True):
            xr = x_reads(p ^ 1, p ^ 1)
            gaps[3] += [e.wait(tag + "x", vm=True)]
            for j in range(4): gaps[4 + j] += xr[2 * j: 2 * j + 2]
        if ks == 2 and kind.get("xdma"):
            g = x_dmas(p ^ 1)
            gaps[3] += [g[0][0][0]]
            gaps[4] += [e.wait(tag + "xw", lg=True), g[0][1][0], g[0][1][1]]
            gaps[5] += [g[0][1][2], g[0][1][3], g[1][0][0]]
            gaps[6] += ["s_add_u32 %s, %s, 128" % (s(sXso0), s(sXso0)), g[1][1][0], g[1][1][1]]
            gaps[7] += [g[1][1][2], g[1][1][3], "s_add_u32 %s, %s, 128" % (s(sXso1), s(sXso1))]
        if ks == 2 and kind.get("vset") is not None:
            vs = kind["vset"]
            if vs == 0:
                gaps[0] += ["s_mul_i32 %s, %s, 6144" % (s(sT0), s(sWv))]
                gaps[1] += ["s_lshl_b32 %s, %s, 17" % (s(sT2), s(sHead))]
                gaps[2] += ["s_add_u32 %s, %s, %s" % (s(sT0), s(sT0), s(sT2)), "s_mov_b32 %s, %s" % (s(sT1), s(sXm))]
            else:
                gaps[0] += ["s_xor_b32 %s, %s, 2" % (s(sT0), s(sWv)), "s_lshl_b32 %s, %s, 13" % (s(sT0), s(sT0))]
                gaps[1] += ["s_lshl_b32 %s, %s, 17" % (s(sT2), s(sHead)), "s_add_u32 %s, %s, 32768" % (s(sT2), s(sT2)), "s_sub_u32 %s, %s, %s" % (s(sT2), s(sT2), s(sKm0))]
                gaps[2] += ["s_add_u32 %s, %s, %s" % (s(sT0), s(sT0), s(sT2)), "s_add_u32 %s, %s, 32768" % (s(sT1), s(sXm)), "s_cmp_eq_u32 %s, 1" % s(sWv),
                            "s_cselect_b32 %s, %d, %s" % (s(sT0), OOB, s(sT0)), "s_cselect_b32 %s, %s, %s" % (s(sT1), s(sBey), s(sT1))]
            gaps[3] += ["s_mov_b32 m0, %s" % s(sT1), "s_add_u32 %s, %s, 4096" % (s(sT2), s(sT0))]
            d0 = [dma(vVD, sV, sT0, n * 1024, nt=True) for n in range(4)]
            d1 = [dma(vVD, sV, sT2, n * 1024, nt=True) for n in range(4)]
            gaps[4] += [e.wait(tag + "vw", lg=True), d0[0], d0[1]]
            gaps[5] += [d0[2], d0[3], "s_add_u32 m0, %s, 4096" % s(sT1)]
            gaps[6] += ["s_nop 0", d1[0], d1[1]]
            gaps[7] += [d1[2], d1[3]]
        if ks == 3:
            if kind.get("wnexthead") == 0:
                gaps[2] += ["s_cmp_eq_u32 %s, 0" % s(sHead), "s_cselect_b32 %s, 256, %d" % (s(sWso), OOB)]
            gaps[3] += ["s_add_u32 m0, %s, %d" % (s(sWm), p * 16384)]
            for n in range(4): gaps[4 + n] += [dma(vWD + n, sW, sWso, n * 1024)]
            gaps[7] += ["s_add_u32 %s, %s, 524288" % (s(sWso), s(sWso))]
        e.all(pre)
        weave(e, mf, gaps)

def q_phase(e):
    e.phase = "q"
    e("L1_head:")
    stamp(e, "head")
    e("s_barrier")
    for l in x_reads(0, 0): e(l)
    for pr in w_reads(0, 0, 0): e.all(pr)
    e("s_mov_b32 %s, %d" % (s(sXso0), 2 * 128))
    e("s_mov_b32 %s, %d" % (s(sXso1), 2 * 128 + 32768))
    e("s_lshl_b32 %s, %s, 8" % (s(sWso), s(sHead)))
    e("s_add_u32 %s, %s, %d" % (s(sWso), s(sWso), 2 * 524288))
    e("s_mov_b32 %s, 0" % s(sGq))
    e("s_mov_b32 %s, 16384" % s(sDq))
    e("s_mov_b32 %s, 2" % s(sCnt))
    g = x_dmas(0)
    e(g[0][0][0])
    e(e.wait("qpro_x", lg=True))
    e.all(g[0][1]); e(g[1][0][0]); e("s_add_u32 %s, %s, 128" % (s(sXso0), s(sXso0))); e.all(g[1][1])
    e("s_add_u32 %s, %s, 128" % (s(sXso1), s(sXso1)))
    e("L1_qloop:")
    q_unit(e, 0, dict(tag="a", kpair=True, xdma=True))
    q_unit(e, 1, dict(tag="b", kpair=True, xdma=True))
    e("s_sub_u32 %s, %s, 1" % (s(sCnt), s(sCnt)))
    e("s_cmp_lg_u32 %s, 0" % s(sCnt))
    e("s_cbranch_scc1 L1_qloop")
    q_unit(e, 4, dict(tag="4", xdma=True))
    q_unit(e, 5, dict(tag="5", vset=0))
    q_unit(e, 6, dict(tag="6", vset=1, wnexthead=0))
    q_unit(e, 7, dict(tag="7", xread=False, wnext=False))

def q_epilogue(e):
    cs = vT
    e("v_mov_b32 %s, 0x%x" % (v(cs), f2u(CSCALE)))
    e("v_mov_b32 %s, 0x%x" % (v(cs + 1), f2u(CSCALE)))
    e("s_nop 7")
    k = 0
    for t in range(2):
        for dt in range(4):
            base = Ot(dt, t)
            T = vS0 + 8 * (k % 4); k += 1
            for j in range(8): e("v_pk_mul_f32 %s, %s, %s" % (v(base + 2 * j, 2), v(base + 2 * j, 2), v(cs, 2)))
            for j in range(8): e("v_cvt_pk_bf16_f32 %s, %s, %s" % (v(T + j), v(base + 2 * j), v(base + 2 * j + 1)))
            for j in range(8): e("v_accvgpr_write_b32 %s, %s" % (a(Qf(2 * dt + (j >> 2), t) + (j & 3)), v(T + j)))
            e(zero_mfma(base))

def max_prepass(e):
    e("s_cmp_eq_u32 %s, 0" % s(sMode))
    e("s_cbranch_scc1 L1_nomax")
    t0, t1, m0_, m1_ = vT, vT + 1, vT + 2, vT + 3
    e("v_and_b32 %s, 63, v0" % v(t1))
    e("v_and_b32 %s, 0x13, %s" % (v(t0), v(t1)))
    e("v_and_b32 %s, 4, %s" % (v(vT + 4), v(t1)))
    e("v_lshl_or_b32 %s, %s, 1, %s" % (v(t0), v(vT + 4), v(t0)))
    e("v_and_b32 %s, 8, %s" % (v(vT + 4), v(t1)))
    e("v_lshrrev_b32 %s, 1, %s" % (v(vT + 4), v(vT + 4)))
    e("v_or_b32 %s, %s, %s" % (v(t0), v(t0), v(vT + 4)))
    e("v_lshrrev_b32 %s, 5, %s" % (v(t1), v(t1)))
    e("v_lshlrev_b32 %s, 4, %s" % (v(t1), v(t1)))
    e("v_lshl_or_b32 %s, %s, 8, %s" % (v(t0), v(t0), v(t1)))
    e("v_mov_b32 %s, 0xff800000" % v(m0_))
    e("v_mov_b32 %s, 0xff800000" % v(m1_))
    e("s_lshl_b32 %s, %s, 17" % (s(sT0), s(sHead)))
    e("s_mov_b32 %s, 16" % s(sCnt))
    e("L1_maxloop:")
    for ks in range(8): e("buffer_load_dwordx4 %s, %s, %s, %s offen offset:%d" % (a(Kf(ks), 4), v(t0), s(sK, 4), s(sT0), ks * 32))
    e("s_waitcnt vmcnt(0)")
    for t in range(2):
        S = vS0 if t == 0 else vS1
        for ks in range(8): e("%s %s, %s, %s, %s" % (MF32, v(S, 16), a(Kf(ks), 4), a(Qf(ks, t), 4), "0" if ks == 0 else v(S, 16)))
    e("s_nop 15")
    for t in range(2):
        S = vS0 if t == 0 else vS1; m = m0_ if t == 0 else m1_
        for j in range(8): e("v_max3_f32 %s, %s, %s, %s" % (v(m), v(S + 2 * j), v(S + 2 * j + 1), v(m)))
    e("s_add_u32 %s, %s, 8192" % (s(sT0), s(sT0)))
    e("s_sub_u32 %s, %s, 1" % (s(sCnt), s(sCnt)))
    e("s_cmp_lg_u32 %s, 0" % s(sCnt))
    e("s_cbranch_scc1 L1_maxloop")
    for t in range(2):
        m = m0_ if t == 0 else m1_; C = vC0 if t == 0 else vC1
        e("v_mov_b32 %s, %s" % (v(vT + 4), v(m)))
        e("s_nop 1")
        e("v_permlane32_swap_b32 %s, %s" % (v(vT + 4), v(m)))
        e("s_nop 1")
        e("v_max_f32 %s, %s, %s" % (v(m), v(m), v(vT + 4)))
        for j in range(16): e("v_sub_f32 %s, 0, %s" % (v(C + j), v(m)))
    e("L1_nomax:")

def sm_pos(S, P, L, pos):
    r = []
    if pos < 16: r.append("v_exp_f32 %s, %s" % (v(S + pos), v(S + pos)))
    if pos >= 1: r.append("v_add_f32 %s, %s, %s" % (v(L), v(L), v(S + pos - 1)))
    if pos >= 2 and pos % 2 == 0:
        k = pos // 2 - 1
        r.append("v_cvt_pk_bf16_f32 %s, %s, %s" % (v(P + k), v(S + 2 * k), v(S + 2 * k + 1)))
    return r
def smA(pos): return sm_pos(vS0, vP0, vL0, pos)
def smB(pos): return sm_pos(vS1, vP1, vL1, pos)

def pv_mf(t):
    P = vP0 if t == 0 else vP1
    return ["%s %s, %s, %s, %s" % (MF32, v(Ot(j & 3, t), 16), a(Vf(j >> 2, j & 3), 4), v(P + 4 * (j >> 2), 4), v(Ot(j & 3, t), 16)) for j in range(8)]
def qk_mf(t):
    S = vS0 if t == 0 else vS1; C = vC0 if t == 0 else vC1
    return ["%s %s, %s, %s, %s" % (MF32, v(S, 16), a(Kf(ks), 4), a(Qf(ks, t), 4), v(C if ks == 0 else S, 16)) for ks in range(8)]

def att_step(e, par):
    e.phase = "att"
    tag = "s%d" % par
    gaps = [[] for _ in range(8)]
    for j in range(8):
        if j < 2: gaps[j] += smB(14 + j)
        elif j == 2: gaps[j] += smA(0) + smB(16)
        else: gaps[j] += smA(j - 2)
        u, t4 = j >> 2, j & 3
        for i2 in range(2):
            gaps[j].append("ds_read_b64_tr_b16 %s, %s offset:%d" % (a(Vf(u, t4) + 2 * i2, 2), v(vVA + t4), par * 8192 + u * 4096 + i2 * 1024))
    weave(e, pv_mf(1), gaps)
    e(e.wait(tag + "B", vm=True))
    if "att:bar" not in e.o.get("ablate", ""): e("s_barrier")
    gaps = [[] for _ in range(8)]
    for j in range(8):
        gaps[j] += smA(6 + j)
        gaps[j].append("ds_read_b128 %s, %s offset:%d" % (a(Kf(j), 4), v(vKA + j), 8192 if par == 0 else 0))
        if par == 1 and j % 2 == 1: gaps[j].append("v_xor_b32 %s, %s, %s" % (v(vVA + (j >> 1)), s(sD), v(vVA + (j >> 1))))
    weave(e, qk_mf(1), gaps)
    e(e.wait(tag + "G3", lg=True))
    gaps = [[] for _ in range(8)]
    for j in range(8):
        if j < 2: gaps[j] += smA(14 + j)
        elif j == 2: gaps[j] += smB(0) + smA(16)
        else: gaps[j] += smB(j - 2)
    gaps[1] += ["s_add_u32 m0, %s, %s" % (s(sG), s(sKm0 + par))]
    gaps[3] += [dma(vKD, sK, sKso, 0, nt=True)]
    gaps[5] += [dma(vKD + 1, sK, sKso, 1024, nt=True)]
    gaps[6] += ["s_add_u32 %s, %s, 8192" % (s(sKso), s(sKso))]
    gaps[7] += ["s_add_u32 %s, %s, %s" % (s(sT0), s(sGp if par == 0 else sG), s(sVm0 + par)), "s_cmp_lt_u32 %s, %s" % (s(sVso), s(sVlim))]
    weave(e, pv_mf(0), gaps)
    e(e.wait(tag + "G0", lg=True))
    gaps = [[] for _ in range(8)]
    for j in range(8): gaps[j] += smB(6 + j)
    gaps[0] = ["s_cselect_b32 m0, %s, %s" % (s(sT0), s(sBey))] + gaps[0]
    gaps[1] += [dma(vVD, sV, sVso, 0, nt=True)]
    gaps[3] += [dma(vVD, sV, sVso, 1024, nt=True)]
    gaps[4] += ["s_add_u32 %s, %s, 8192" % (s(sVso), s(sVso))]
    if par == 0:
        for j in range(8): gaps[j].append("v_xor_b32 %s, %s, %s" % (v(vKA + j), s(sD), v(vKA + j)))
    else:
        gaps[5] += ["s_mov_b32 %s, %s" % (s(sGp), s(sG)), "s_xor_b32 %s, %s, %s" % (s(sG), s(sG), s(sD))]
        gaps[6] += ["s_xor_b32 %s, %s, 49152" % (s(sD), s(sD))]
        gaps[7] += ["s_sub_u32 %s, %s, 1" % (s(sCnt), s(sCnt)), "s_cmp_lg_u32 %s, 0" % s(sCnt)]
    weave(e, qk_mf(0), gaps)

def attention(e):
    o = e.o
    e(e.wait("apro", vm=True)); e("s_barrier")
    for ks in range(8): e("ds_read_b128 %s, %s" % (a(Kf(ks), 4), v(vKA + ks)))
    e(zero_mfma(aV, True)); e(zero_mfma(aV + 16, True))
    e("v_mov_b32 %s, 0" % v(vL0)); e("v_mov_b32 %s, 0" % v(vL1))
    for k in range(6): e("v_mov_b32 %s, 0" % v(vP1 + k))
    e("v_mov_b32 %s, 0" % v(vS1 + 12)); e("v_mov_b32 %s, 0" % v(vS1 + 13))
    e("v_mov_b32 %s, 0xff800000" % v(vS1 + 14)); e("v_mov_b32 %s, 0xff800000" % v(vS1 + 15))
    e("s_mov_b32 %s, 0" % s(sG))
    e("s_mov_b32 %s, 32768" % s(sGp))
    e("s_mov_b32 %s, 16384" % s(sD))
    e("s_lshl_b32 %s, %s, 17" % (s(sT0), s(sHead)))
    e("s_add_u32 %s, %s, %d" % (s(sKso), s(sT0), 8 * 8192))
    e("s_add_u32 %s, %s, %d" % (s(sVso), s(sT0), 7 * 8192))
    e("s_add_u32 %s, %s, 131072" % (s(sVlim), s(sT0)))
    e("s_mov_b32 %s, 8" % s(sCnt))
    if o.get("warm", 1):
        e("v_and_b32 %s, 63, v0" % v(vT))
        e("v_lshrrev_b32 %s, 1, %s" % (v(vT + 1), v(vT)))
        e("v_and_b32 %s, 1, %s" % (v(vT), v(vT)))
        e("v_lshlrev_b32 %s, 7, %s" % (v(vT), v(vT)))
        e("v_lshl_add_u32 %s, %s, 13, %s" % (v(vT), v(vT + 1), v(vT)))
        e("s_mul_i32 %s, %s, %d" % (s(sT1), s(sWv), 96 * 8192))
        e("s_cmp_eq_u32 %s, 0" % s(sHead))
        e("s_cselect_b32 %s, 256, %d" % (s(sT2), OOB))
        e("s_add_u32 %s, %s, %s" % (s(sT1), s(sT1), s(sT2)))
        for n in range(3):
            e("s_add_u32 %s, %s, %d" % (s(sT2), s(sT1), (128 + 32 * n) * 8192))
            e("buffer_load_dword %s, %s, %s, %s offen%s ; nochk" % (v(vT + 8 + n), v(vT), s(sW, 4), s(sT2), pol(sW)))
    e(e.wait("apro_k", lg=True))
    weave(e, qk_mf(0), [[] for _ in range(8)])
    stamp(e, "Apro")
    e("L1_att:")
    stamp(e, "it", 3)
    att_step(e, 0)
    att_step(e, 1)
    e("s_cbranch_scc1 L1_att")
    e("s_barrier")
    e("s_cmp_eq_u32 %s, 0" % s(sHead))
    e("s_cselect_b32 %s, %s, %s" % (s(sXem), s(sXm), s(sBey)))
    e("s_cselect_b32 %s, 0, %d" % (s(sXe0), OOB))
    gaps = [[] for _ in range(8)]
    for j in range(3): gaps[j] += smB(14 + j)
    for q in range(4):
        u, m = q >> 1, q & 1
        gaps[2 * q] += ["s_add_u32 m0, %s, %d" % (s(sXem), u * 32768 + m * 4096), "s_add_u32 %s, %s, %d" % (s(sT0), s(sXe0), u * 128 + m * 32768)]
        d = [dma(vXD + n, sX, sT0, n * 1024) for n in range(4)]
        gaps[2 * q] += d[0:2]; gaps[2 * q + 1] += d[2:4]
    weave(e, pv_mf(1), gaps)

def o_epilogue(e):
    inv = [vT, vT + 2]; tmp = vT + 4; chk = vT + 8
    for t in range(2):
        L = vL0 if t == 0 else vL1
        e("v_mov_b32 %s, %s" % (v(tmp), v(L)))
        e("s_nop 1")
        e("v_permlane32_swap_b32 %s, %s" % (v(tmp), v(L)))
        e("s_nop 1")
        e("v_add_f32 %s, %s, %s" % (v(L), v(L), v(tmp)))
        e("v_cmp_nle_f32 vcc, 0x%x, %s" % (f2u(2.0 ** -16), v(L)))
        e("v_rcp_f32 %s, %s" % (v(inv[t]), v(L)))
        e("s_nop 2")
        e("s_or_b64 %s, %s, vcc" % (s(sBad, 2), s(sBad, 2)))
        e("v_cmp_nge_f32 vcc, 0x%x, %s" % (f2u(2.0 ** 64), v(L)))
        e("v_mov_b32 %s, %s" % (v(inv[t] + 1), v(inv[t])))
        e("s_nop 3")
        e("s_or_b64 %s, %s, vcc" % (s(sBad, 2), s(sBad, 2)))
    e("s_lshl_b32 %s, %s, 19" % (s(sOso), s(sWv)))
    e("s_lshl_b32 %s, %s, 1" % (s(sT0), s(sHp)))
    e("s_add_u32 %s, %s, %s" % (s(sT0), s(sT0), s(sHead)))
    e("s_lshl_b32 %s, %s, 13" % (s(sT0), s(sT0)))
    e("s_add_u32 %s, %s, %s" % (s(sOso), s(sOso), s(sT0)))
    k = 0; first = True
    for t in range(2):
        for t4 in range(4):
            base = Ot(t4, t)
            T = vS0 + 8 * (k % 6); k += 1
            if t4 == 0 and t == 1: e("s_add_u32 %s, %s, 262144" % (s(sOso), s(sOso)))
            if t4 % 2 == 0: e("s_add_u32 %s, %s, %d" % (s(sT0), s(sOso), (t4 >> 1) * 4096))
            for j in range(8): e("v_pk_mul_f32 %s, %s, %s" % (v(base + 2 * j, 2), v(base + 2 * j, 2), v(inv[t], 2)))
            for j in range(8): e("v_cvt_pk_bf16_f32 %s, %s, %s" % (v(T + j), v(base + 2 * j), v(base + 2 * j + 1)))
            e(zero_mfma(base))
            for u in range(2):
                e("buffer_store_dwordx4 %s, %s, %s, %s offen offset:%d%s" % (v(T + 4 * u, 4), v(vST), s(sO, 4), s(sT0), ((t4 & 1) * 2 + u) * 1024, pol(sO)))
            for u in range(2):
                e("%s %s, %s, %s, %s" % (MF16, v(chk, 4), ZB, v(T + 4 * u, 4), "0" if first else v(chk, 4))); first = False
    e("s_nop 7")
    e("v_cmp_u_f32 vcc, %s, %s" % (v(chk), v(chk)))
    e("s_nop 3")
    e("s_or_b64 %s, %s, vcc" % (s(sBad, 2), s(sBad, 2)))

def k1_tail(e):
    e("s_add_u32 %s, %s, 1" % (s(sHead), s(sHead)))
    e("s_cmp_eq_u32 %s, 2" % s(sHead))
    e("s_cbranch_scc1 L1_fin")
    e("s_mov_b32 %s, 262144" % s(sV + 2))
    e("s_mov_b32 %s, %s" % (s(sKq0), s(sBey)))
    e("s_mov_b32 %s, %s" % (s(sKq1), s(sBey)))
    e("s_mov_b32 %s, %d" % (s(sKqso), OOB))
    e(e.wait("head_x0", vm=True))
    e("s_branch L1_head")
    e("L1_fin:")
    stamp_write(e, 56)
    if e.o.get("ablate"): e("s_branch L1_end")
    e("s_cmp_lg_u32 %s, 0" % s(sMode))
    e("s_cbranch_scc1 L1_end")
    e("s_waitcnt vmcnt(0) lgkmcnt(0)")
    e("s_barrier")
    e("s_cmp_lg_u64 %s, 0" % s(sBad, 2))
    e("s_cselect_b32 %s, 1, 0" % s(sT0))
    e("v_mov_b32 %s, %s" % (v(vT), s(sT0)))
    e("s_lshl_b32 %s, %s, 2" % (s(sT1), s(sWv)))
    e("v_mov_b32 %s, %s" % (v(vT + 1), s(sT1)))
    e("ds_write_b32 %s, %s" % (v(vT + 1), v(vT)))
    e("s_waitcnt lgkmcnt(0)")
    e("s_barrier")
    e("v_mov_b32 %s, 0" % v(vT + 1))
    e("ds_read_b128 %s, %s" % (v(vT + 4, 4), v(vT + 1)))
    e("s_waitcnt lgkmcnt(0)")
    e("v_or3_b32 %s, %s, %s, %s" % (v(vT), v(vT + 4), v(vT + 5), v(vT + 6)))
    e("v_or_b32 %s, %s, %s" % (v(vT), v(vT), v(vT + 7)))
    e("s_nop 0")
    e("v_readfirstlane_b32 %s, %s" % (s(sT0), v(vT)))
    e("s_nop 3")
    e("s_cmp_eq_u32 %s, 0" % s(sT0))
    e("s_cbranch_scc1 L1_end")
    e("s_mov_b32 %s, 1" % s(sMode))
    e("s_barrier")
    e("s_branch L1_again")
    e("L1_end:")
    e("s_endpgm")

def k1(e, name):
    POL.clear()
    POL.update({sX: e.o.get("xpol", ""), sW: e.o.get("wpol", ""), sK: e.o.get("kvpol", "nt"), sV: e.o.get("kvpol", "nt"), sO: e.o.get("opol", "")})
    e(".text"); e(".globl %s" % name); e(".p2align 8"); e(".type %s,@function" % name); e("%s:" % name)
    k1_init(e)
    q_phase(e)
    stamp(e, "Qend")
    q_epilogue(e)
    max_prepass(e)
    stamp(e, "Qepi")
    attention(e)
    stamp(e, "Aend")
    o_epilogue(e)
    stamp(e, "Oepi")
    k1_tail(e)

def desc(e, name, vgpr, accum, sgpr=102):
    e('.section .rodata,"a"')
    e(".p2align 6")
    e(".amdhsa_kernel %s" % name)
    e("  .amdhsa_next_free_vgpr %d" % vgpr)
    e("  .amdhsa_next_free_sgpr %d" % sgpr)
    e("  .amdhsa_accum_offset %d" % accum)
    e("  .amdhsa_group_segment_fixed_size 0")
    e("  .amdhsa_kernarg_size 104")
    e("  .amdhsa_user_sgpr_count 2")
    e("  .amdhsa_user_sgpr_kernarg_segment_ptr 1")
    e("  .amdhsa_system_sgpr_workgroup_id_x 1")
    e(".end_amdhsa_kernel")

HDR = """; Kernarg (104 bytes): 0 A_x, 8 A_k_cache, 16 A_v_cache, 24 A_wq, 32 A_wo, 40 B_x, 48 B_k_cache,
"""
def gen_k1_only(solved, opts):
    e = Em(solved, opts)
    e(HDR.rstrip())
    e("; @launch grid=(256,1,1) block=(256,1,1) lds=163840")
    e('.amdgcn_target "amdgcn-amd-amdhsa--gfx950"')
    k1(e, NAME + "_kernel")
    desc(e, NAME + "_kernel", 512, 256)
    return e.text()

k2_vA = 2
k2_vOd = 4
k2_vWd = 5
k2_vT = 10
k2_acc = 32
k2_A = 64
k2_sO, k2_sW, k2_sOut = 4, 8, 12
k2_sWv, k2_sM, k2_sOo, k2_sOo2, k2_sWo, k2_sCnt = 16, 17, 18, 19, 20, 21
def k2A(st, nt): return k2_A + (st * 2 + nt) * 4
def k2O(slot, ks): return (slot * 8 + ks) * 4

def k2_areads(slot, ks):
    st = ks & 3
    return ["ds_read_b64_tr_b16 %s, %s offset:%d" % (v(k2A(st, nt) + 2 * i2, 2), v(k2_vA + nt), slot * 16384 + ks * 2048 + i2 * 512) for nt in range(2) for i2 in range(2)]
def k2_oload(slot, ks, so1, so2):
    return "buffer_load_dwordx4 %s, %s, %s, %s offen offset:%d%s" % (a(k2O(slot, ks), 4), v(k2_vOd), s(k2_sO, 4), s(so1 if ks < 4 else so2), (ks & 3) * 1024, pol("k2o"))
def k2_wdma(n):
    return "buffer_load_dwordx4 %s, %s, %s offen offset:%d%s lds" % (v(k2_vWd + n), s(k2_sW, 4), s(k2_sWo), n * 1024, pol("k2w"))

def k2(e, name):
    POL["k2o"] = e.o.get("k2opol", ""); POL["k2w"] = e.o.get("k2wpol", "")
    e(".text"); e(".globl %s" % name); e(".p2align 8"); e(".type %s,@function" % name); e("%s:" % name)
    e("s_cmp_ge_u32 s2, 256")
    e("s_cbranch_scc1 L2_end")
    stamp_entry(e)
    e("s_load_dwordx2 s[24:25], s[0:1], 32")
    e("s_load_dwordx2 s[26:27], s[0:1], 72")
    e("s_load_dwordx2 s[28:29], s[0:1], 80")
    e("s_load_dwordx2 s[30:31], s[0:1], 96")
    l, t0, t1, t2 = k2_vT, k2_vT + 1, k2_vT + 2, k2_vT + 3
    e("v_and_b32 %s, 63, v0" % v(l))
    e("v_lshrrev_b32 %s, 6, v0" % v(t0))
    e("v_lshlrev_b32 %s, 4, %s" % (v(k2_vOd), v(l)))
    e("v_readfirstlane_b32 %s, %s" % (s(k2_sWv), v(t0)))
    e("s_lshr_b32 s3, s2, 3")
    e("s_and_b32 s32, s2, 3"); e("s_lshl_b32 s32, s32, 1"); e("s_and_b32 s33, s3, 1"); e("s_add_u32 s32, s32, s33")
    e("s_bfe_u32 s33, s3, 0x10001")
    e("s_lshr_b32 s34, s3, 2")
    e("s_bfe_u32 s35, s2, 0x10002")
    e("v_lshrrev_b32 %s, 3, %s" % (v(t0), v(l)))
    e("v_bfe_u32 %s, %s, 4, 1" % (v(t1), v(l)))
    e("v_lshlrev_b32 %s, 2, %s" % (v(t1), v(t1)))
    e("v_and_b32 %s, 7, %s" % (v(t2), v(l)))
    e("v_xor_b32 %s, %s, %s" % (v(t1), v(t1), v(t2)))
    e("v_lshlrev_b32 %s, 4, %s" % (v(t1), v(t1)))
    e("v_lshl_add_u32 %s, %s, 10, %s" % (v(t0), v(t0), v(t1)))
    e("s_lshl_b32 s36, %s, 15" % s(k2_sWv))
    e("v_add_u32 %s, s36, %s" % (v(k2_vWd), v(t0)))
    for n in range(1, 4): e("v_add_u32 %s, %d, %s" % (v(k2_vWd + n), n * 7168, v(k2_vWd)))
    e("s_lshl_b32 %s, %s, 12" % (s(k2_sM), s(k2_sWv)))
    e("s_waitcnt lgkmcnt(0)")
    e("s_cmp_eq_u32 s35, 0")
    e("s_cselect_b64 s[24:25], s[24:25], s[26:27]")
    e("s_lshl_b32 s36, s34, 7")
    e("s_add_u32 %s, s24, s36" % s(k2_sW))
    e("s_addc_u32 %s, s25, 0" % s(k2_sW + 1))
    e("s_sub_u32 %s, %d, s36" % (s(k2_sW + 2), 4096 * 1024))
    e("s_mov_b32 %s, 0x20000" % s(k2_sW + 3))
    e("s_lshl_b32 s36, s35, 3"); e("s_add_u32 s36, s36, s32"); e("s_lshl_b32 s36, s36, 1"); e("s_add_u32 s36, s36, s33")
    e("s_lshl_b32 s36, s36, 2"); e("s_add_u32 s36, s36, %s" % s(k2_sWv)); e("s_lshl_b32 s36, s36, 18")
    e("s_add_u32 %s, s30, s36" % s(k2_sO))
    e("s_addc_u32 %s, s31, 0" % s(k2_sO + 1))
    e("s_mov_b32 %s, 262144" % s(k2_sO + 2))
    e("s_mov_b32 %s, 0x20000" % s(k2_sO + 3))
    for T in range(4):
        if T < 3:
            e("s_add_u32 m0, %s, %d" % (s(k2_sM), T * 16384))
            e("s_mov_b32 %s, %d" % (s(k2_sWo), T * 131072))
            for n in range(4): e(k2_wdma(n))
        e("s_mov_b32 %s, %d" % (s(k2_sOo), T * 8192))
        e("s_mov_b32 %s, %d" % (s(k2_sOo2), T * 8192 + 4096))
        for ks in range(8): e(k2_oload(T, ks, k2_sOo, k2_sOo2))
    e("s_mov_b32 %s, %d" % (s(k2_sWo), 3 * 131072))
    e("s_mov_b32 %s, %d" % (s(k2_sOo), 4 * 8192))
    e("s_mov_b32 %s, %d" % (s(k2_sOo2), 4 * 8192 + 4096))
    e("s_mul_i32 s36, s32, 491520")
    e("s_add_u32 %s, s28, s36" % s(k2_sOut))
    e("s_addc_u32 %s, s29, 0" % s(k2_sOut + 1))
    e("s_mov_b32 %s, 491520" % s(k2_sOut + 2))
    e("s_mov_b32 %s, 0x20000" % s(k2_sOut + 3))
    e("v_lshrrev_b32 %s, 5, %s" % (v(t0), v(l)))
    e("v_bfe_u32 %s, %s, 2, 2" % (v(t1), v(l)))
    e("v_lshl_add_u32 %s, %s, 3, %s" % (v(t0), v(t0), v(t1)))
    e("v_lshlrev_b32 %s, 7, %s" % (v(t0), v(t0)))
    e("v_and_b32 %s, 2, %s" % (v(t1), v(t1)))
    e("v_lshl_or_b32 %s, %s, 5, %s" % (v(t0), v(t1), v(t0)))
    e("v_bfe_u32 %s, %s, 4, 1" % (v(t1), v(l)))
    e("v_lshlrev_b32 %s, 5, %s" % (v(t1), v(t1)))
    e("v_add_u32 %s, %s, %s" % (v(t0), v(t0), v(t1)))
    e("v_and_b32 %s, 1, %s" % (v(t1), v(l)))
    e("v_lshl_or_b32 %s, %s, 4, %s" % (v(t0), v(t1), v(t0)))
    e("v_bfe_u32 %s, %s, 1, 1" % (v(t1), v(l)))
    e("v_lshl_or_b32 %s, %s, 3, %s" % (v(k2_vA), v(t1), v(t0)))
    e("v_xor_b32 %s, 64, %s" % (v(k2_vA + 1), v(k2_vA)))
    e("s_lshl_b32 s36, s33, 2"); e("s_add_u32 s36, s36, %s" % s(k2_sWv)); e("s_lshl_b32 s36, s36, 16")
    e("s_lshl_b32 s37, s35, 10"); e("s_add_u32 s36, s36, s37"); e("s_lshl_b32 s37, s34, 7"); e("s_add_u32 s36, s36, s37")
    e("v_and_b32 %s, 31, %s" % (v(t0), v(l)))
    e("v_lshlrev_b32 %s, 11, %s" % (v(t0), v(t0)))
    e("v_lshrrev_b32 %s, 5, %s" % (v(t1), v(l)))
    e("v_lshl_or_b32 %s, %s, 4, %s" % (v(t0), v(t1), v(t0)))
    e("v_add_u32 %s, s36, %s" % (v(k2_vT + 4), v(t0)))
    for k in range(32): e("v_mov_b32 %s, 0" % v(k2_acc + k))
    e("s_mov_b32 %s, 8" % s(k2_sCnt))
    e(e.wait("k2pro", vm=True)); e("s_barrier")
    stamp(e, "k2start")
    e.all(k2_areads(0, 0)); e.all(k2_areads(0, 1))
    e("L2_loop:")
    for slot in range(4):
        for ks in range(8):
            pre = [e.wait("k2s%dk%d" % (slot, ks), vm=True, lg=True)]
            if ks == 6: pre.append("s_barrier")
            mf = ["%s %s, %s, %s, %s" % (MF32, v(k2_acc + 16 * nt, 16), v(k2A(ks & 3, nt), 4), a(k2O(slot, ks), 4), v(k2_acc + 16 * nt, 16)) for nt in range(2)]
            nslot, nks = (slot, ks + 2) if ks < 6 else ((slot + 1) & 3, ks - 6)
            ar = k2_areads(nslot, nks)
            gaps = [ar[0:2], ar[2:4]]
            gaps[1].append(k2_oload(slot, ks, k2_sOo, k2_sOo2))
            if ks == 6:
                gaps[0] = ["s_add_u32 m0, %s, %d" % (s(k2_sM), ((slot + 3) & 3) * 16384)] + gaps[0] + [k2_wdma(0)]
                gaps[1].append(k2_wdma(1))
            if ks == 7:
                gaps[0].append(k2_wdma(2)); gaps[1] += [k2_wdma(3), "s_add_u32 %s, %s, 131072" % (s(k2_sWo), s(k2_sWo)),
                    "s_add_u32 %s, %s, 8192" % (s(k2_sOo), s(k2_sOo)), "s_add_u32 %s, %s, 8192" % (s(k2_sOo2), s(k2_sOo2))]
            e.all(pre); weave(e, mf, gaps)
    e("s_sub_u32 %s, %s, 1" % (s(k2_sCnt), s(k2_sCnt)))
    e("s_cmp_lg_u32 %s, 0" % s(k2_sCnt))
    e("s_cbranch_scc1 L2_loop")
    stamp(e, "k2loop")
    e("s_waitcnt lgkmcnt(0)")
    e("s_nop 15")
    T = k2_A
    for nt in range(2):
        for j in range(8): e("v_cvt_pk_bf16_f32 %s, %s, %s" % (v(T + 8 * nt + j), v(k2_acc + 16 * nt + 2 * j), v(k2_acc + 16 * nt + 2 * j + 1)))
    for nt in range(2):
        for u in range(2): e("buffer_store_dwordx4 %s, %s, %s, 0 offen offset:%d" % (v(T + 8 * nt + 4 * u, 4), v(k2_vT + 4), s(k2_sOut, 4), nt * 64 + u * 32))
    stamp_write(e, 30)
    e("L2_end:")
    e("s_endpgm")

def gen_full(solved, opts):
    e = Em(solved, opts)
    e(HDR.rstrip())
    e("; @launch kernel=%s_kernel grid=(256,1,1) block=(256,1,1) lds=163840" % NAME)
    e("; @launch kernel=oproj_kernel grid=(256,1,1) block=(256,1,1) lds=65536")
    e('.amdgcn_target "amdgcn-amd-amdhsa--gfx950"')
    k1(e, NAME + "_kernel")
    k2(e, "oproj_kernel")
    desc(e, NAME + "_kernel", 512, 256)
    desc(e, "oproj_kernel", 256, 128)
    return e.text()
def gen_k2_only(solved, opts):
    e = Em(solved, opts)
    e(HDR.rstrip())
    e("; @launch grid=(256,1,1) block=(256,1,1) lds=65536")
    e('.amdgcn_target "amdgcn-amd-amdhsa--gfx950"')
    k2(e, NAME + "_kernel")
    desc(e, NAME + "_kernel", 256, 128)
    return e.text()
```

```python
import sys, time, json
sys.path.insert(0, "tools")
import numpy as np
import emu
from emu import Mem, WG, parse_program, bf16_round

def bf(x): return bf16_round(x.astype(np.float32)).astype(np.uint16)
def fb(x): return (x.astype(np.uint32) << 16).view(np.float32)

class World:
    def __init__(self, seed=0, scale=1.0, slices=None):
        rng = np.random.default_rng(seed)
        self.mem = Mem(); self.t = {}
        self.filled = set(); self.rng = rng; self.scale = scale
        ptrs = []
        for br in "AB":
            x = bf(rng.standard_normal((8, 240, 512), dtype=np.float32) * 0.8 * scale)
            k = np.zeros((8, 32, 512, 128), dtype=np.uint16); v = np.zeros((8, 32, 512, 128), dtype=np.uint16)
            wq = bf(rng.standard_normal((512, 4096), dtype=np.float32) * 0.8 * 512 ** -0.5)
            wo = bf(rng.standard_normal((4096, 512), dtype=np.float32) * 0.05 * 4096 ** -0.5)
            for n, arr in (("x", x), ("k", k), ("v", v), ("wq", wq), ("wo", wo)):
                self.t[br + n] = arr; ptrs.append(self.mem.add(br + n, arr))
        self.out = np.full((8, 240, 1024), 0x7FC0, dtype=np.uint16); ptrs.append(self.mem.add("out", self.out))
        self.dbg = np.zeros(64, dtype=np.uint32); ptrs.append(self.mem.add("dbg", self.dbg))
        self.ws = np.zeros(268435456 // 4, dtype=np.uint32); ptrs.append(self.mem.add("ws", self.ws))
        self.karg = np.array(ptrs, dtype=np.uint64); self.kaddr = self.mem.add("karg", self.karg)
    def fill(self, br, b, h):
        if (br, b, h) in self.filled: return
        self.filled.add((br, b, h))
        r = np.random.default_rng(hash((br, b, h)) & 0xFFFFFF)
        self.t[br + "k"][b, h] = bf(r.standard_normal((512, 128), dtype=np.float32) * 0.8)
        self.t[br + "v"][b, h] = bf(r.standard_normal((512, 128), dtype=np.float32) * 0.05)
    def ref_head(self, br, b, h):
        x = fb(self.t[br + "x"][b]); wq = fb(self.t[br + "wq"][:, h * 128:(h + 1) * 128])
        q = x @ wq
        sc = (q @ fb(self.t[br + "k"][b, h]).T) * 128 ** -0.5
        sc = sc - sc.max(-1, keepdims=True); p = np.exp(sc); p /= p.sum(-1, keepdims=True)
        return p @ fb(self.t[br + "v"][b, h])
    def o_from_ws(self, br, b, h):
        base = ((0 if br == "A" else 1) * 8 + b) * 8 * 262144
        w16 = self.ws.view(np.uint16)
        o = np.zeros((256, 128), dtype=np.float32)
        for qt in range(8):
            for kk in range(8):
                off = (base + h * 65536 + qt * 8192 + kk * 1024) // 2
                fr = fb(w16[off: off + 512]).reshape(2, 32, 8)
                o[qt * 32:(qt + 1) * 32, kk * 16:(kk + 1) * 16] = fr.transpose(1, 0, 2).reshape(32, 16)
        return o

def k1_decode(wg):
    xcd = wg & 7; idx = wg >> 3; br = "AB"[xcd >> 2]; j = xcd & 3
    return br, (j & 1) * 4 + (idx & 3), (j >> 1) * 8 + (idx >> 2)

def entry_of(prog, labels, name): return labels[name]

def run_wg(world, text, wg, entry, solve=None, lds=163840, nwaves=4, quiet=False):
    prog, labels = parse_program(text)
    g = WG(prog, labels, world.mem, world.kaddr, wg, nwaves=nwaves, lds_bytes=lds, entry=labels[entry])
    g.solve = solve
    t = time.time(); n = g.run()
    if not quiet:
        print("wg %d: %d instr, %.1fs, epochs %d, mfma/wave %d, ins/wave %d, errors %d" % (wg, n, time.time() - t, g.epoch, g.waves[0].nmfma, g.waves[0].nins, len(g.errors)))
        if getattr(g, "vm_over", 0): print("  NOTE: up to %d vmem ops outstanding (> 63)" % g.vm_over)
        for ln, (tx, ex) in sorted(g.bank_conf.items()): print("  bank conflict line %d (+%d): %s" % (ln, ex, tx))
    return g
```

```python
import sys, json
sys.path.insert(0, "tools")
import numpy as np
import gen, run_emu
from run_emu import *
def solve_k1(opts, wg=5, world=None):
    world = world or World()
    br, b, hp = k1_decode(wg)
    for h in (2 * hp, 2 * hp + 1): world.fill(br, b, h)
    txt = gen.gen_k1_only({}, opts)
    sol = {}
    g = run_wg(world, txt, wg, gen.NAME + "_kernel", solve=sol)
    return sol, world
if __name__ == "__main__":
    opts = {}
    scale = float(sys.argv[1]) if len(sys.argv) > 1 else 1.0
    world = World(scale=scale)
    sol, world = solve_k1(opts, world=world)
    print("solved:", json.dumps(sol, sort_keys=True))
    txt = gen.gen_k1_only(sol, opts)
    open("k1.s", "w").write(txt)
    for wg in (5, 250):
        br, b, hp = k1_decode(wg)
        for h in (2 * hp, 2 * hp + 1): world.fill(br, b, h)
        world.ws[:] = 0 if False else world.ws[:]
        g = run_wg(world, txt, wg, gen.NAME + "_kernel")
        for h in (2 * hp, 2 * hp + 1):
            ref = world.ref_head(br, b, h); got = world.o_from_ws(br, b, h)[:240]
            print("  head %d: max|ref| %.4e  max err %.4e  rms err %.4e" % (h, np.abs(ref).max(), np.abs(got - ref).max(), np.sqrt(((got - ref) ** 2).mean())))
```

```python
import sys, json
sys.path.insert(0, "tools")
import numpy as np
import gen
from run_emu import *
def k2_decode(wg):
    xcd = wg & 7; idx = wg >> 3
    return "AB"[xcd >> 2], (xcd & 3) * 2 + (idx & 1), (idx >> 1) & 1, idx >> 2
def fill_o(world, br, b, seed=1):
    rng = np.random.default_rng(seed)
    base = ((0 if br == "A" else 1) * 8 + b) * 8 * 262144
    o = bf(rng.standard_normal((256, 4096), dtype=np.float32) * 0.003)
    w16 = world.ws.view(np.uint16)
    fr = o.reshape(8, 32, 32, 8, 2, 8).transpose(2, 0, 3, 4, 1, 5)
    w16[base // 2: base // 2 + fr.size] = fr.reshape(-1)
    return fb(o)
def solve_k2(opts, world=None, wg=77):
    world = world or World()
    br, b, qh, nt8 = k2_decode(wg)
    fill_o(world, br, b)
    sol = {}
    txt = gen.gen_k2_only({}, opts)
    run_wg(world, txt, wg, gen.NAME + "_kernel", solve=sol, lds=gen.K2LDS)
    return sol, world
if __name__ == "__main__":
    opts = {}
    sol, world = solve_k2(opts)
    print(sol)
    txt = gen.gen_k2_only(sol, opts)
    open("k2.s", "w").write(txt)
    for wg in (77, 255 - 8 + 3):
        br, b, qh, nt8 = k2_decode(wg)
        o = fill_o(world, br, b, seed=wg)
        world.out[:] = 0x7FC0
        g = run_wg(world, txt, wg, gen.NAME + "_kernel", lds=gen.K2LDS)
        ref = o[:240] @ fb(world.t[br + "wo"])
        c0 = (0 if br == "A" else 512) + nt8 * 64
        got = fb(world.out[b])
        r0, r1 = qh * 128, min(240, qh * 128 + 128)
        err = np.abs(got[r0:r1, c0:c0 + 64] - ref[r0:r1, nt8 * 64: nt8 * 64 + 64])
        wr = ~np.isnan(fb(world.out))
        print("wg", wg, (br, b, qh, nt8), "max ref %.3e max err %.3e; written elems %d (expected %d)" % (np.abs(ref).max(), err.max(), wr.sum(), (r1 - r0) * 64))
```

```python
import sys, json
sys.path.insert(0, "tools")
import numpy as np
import gen, t_k1, t_k2
from run_emu import *
out = sys.argv[1]; opts = {}
for kv in sys.argv[2:]:
    k, v_ = kv.split("="); opts[k] = int(v_) if v_.lstrip("-").isdigit() else v_
only = opts.get("only")
o2 = dict(opts); o2.pop("ablate", None)
world = World()
sol = {}
K = gen.NAME + "_kernel"
stamps = []
if only != "k2":
    s1, _ = t_k1.solve_k1(o2, world=world); sol.update(s1)
    txt = gen.gen_k1_only(sol, o2)
    g = run_wg(world, txt, 5, K); assert not g.errors
    stamps = g.stamps
    br, b, hp = k1_decode(5)
    for h in (2 * hp, 2 * hp + 1):
        ref = world.ref_head(br, b, h); got = world.o_from_ws(br, b, h)[:240]
        err = np.abs(got - ref).max(); print("  head %d: max err %.4e" % (h, err)); assert err < 2e-4
if only != "k1":
    s2, _ = t_k2.solve_k2(o2, world=world); sol.update(s2)
    txt = gen.gen_k2_only(sol, o2)
    br, b, qh, nt8 = t_k2.k2_decode(77)
    o = t_k2.fill_o(world, br, b, seed=3); world.out[:] = 0x7FC0
    g = run_wg(world, txt, 77, K, lds=65536); assert not g.errors
    if only == "k2": stamps = g.stamps
    ref = o[:240] @ fb(world.t[br + "wo"]); c0 = (0 if br == "A" else 512) + nt8 * 64; got = fb(world.out[b])
    r0, r1 = qh * 128, min(240, qh * 128 + 128)
    err = np.abs(got[r0:r1, c0:c0 + 64] - ref[r0:r1, nt8 * 64: nt8 * 64 + 64]).max(); print("  k2 max err %.3e" % err); assert err < 1e-5
txt = {"k1": gen.gen_k1_only, "k2": gen.gen_k2_only, None: gen.gen_full}[only](sol, opts)
open(out, "w").write(txt)
if opts.get("stamps"): json.dump(stamps, open(out[:-2] + ".stamps.json", "w"))
```

```python
import sys, json, os
NAME = "concat_heads__mha_block_cached__mha_block_cached__near_ridge"

class Em:
    def __init__(self, solved=None, opts=None):
        self.lines = []; self.solved = solved if solved is not None else {}
        self.o = opts or {}
        self.uid = 0
    def __call__(self, s):
        for l in s.split("\n"): self.lines.append(l)
    def all(self, lst):
        for l in lst: self(l)
    def wait(self, name, vm=False, lg=False):
        p = []
        if vm: p.append("vmcnt(%d)" % min(63, self.solved.get(name + ".vm", 63)))
        if lg: p.append("lgkmcnt(%d)" % min(15, self.solved.get(name + ".lg", 15)))
        return "s_waitcnt %s ; auto=%s" % (" ".join(p), name)
    def text(self): return "\n".join(self.lines) + "\n"

def weave(e, mf, gaps):
    assert len(mf) == len(gaps)
    ab = e.o.get("ablate", "")
    ph = getattr(e, "phase", "")
    def keep(x):
        if ph not in ab.split("+") and not any(t.startswith(ph + ":") for t in ab.split("+")): return True
        for t in ab.split("+"):
            if not t.startswith(ph + ":"): continue
            k = t.split(":")[1]
            if k == "dma" and x.startswith("buffer_load") and " lds" in x: return False
            if k == "gld" and x.startswith("buffer_load") and " lds" not in x: return False
            if k == "lds" and x.startswith("ds_read"): return False
            if k == "sm" and (x.startswith("v_exp") or x.startswith("v_add_f32") or x.startswith("v_cvt_pk")): return False
            if k == "xor" and x.startswith("v_xor"): return False
        return True
    nomf = (ph + ":mf") in ab.split("+")
    for m, g in zip(mf, gaps):
        if not nomf: e(m)
        e.all([x for x in g if keep(x)])

def v(n, c=1): return "v%d" % n if c == 1 else "v[%d:%d]" % (n, n + c - 1)
def a(n, c=1): return "a%d" % n if c == 1 else "a[%d:%d]" % (n, n + c - 1)
def s(n, c=1): return "s%d" % n if c == 1 else "s[%d:%d]" % (n, n + c - 1)
MF32 = "v_mfma_f32_32x32x16_bf16"
MF16 = "v_mfma_f32_16x16x32_bf16"

vKA = 2
vVA = 10
vWA = 14
vXA = 18
vKD = 22
vVD = 24
vWD = 25
vXD = 29
vST = 33
vL0, vL1 = 34, 35
vT = 36
vS0, vS1, vP0, vP1, vC0, vC1 = 48, 64, 80, 88, 96, 112
vO = 128
def Ot(t4, t): return vO + (t4 * 2 + t) * 16
aQ, aK, aV, aX, aZ = 0, 64, 96, 128, 252
def Qf(ks, t): return aQ + (ks * 2 + t) * 4
def Kf(ks): return aK + 4 * ks
def Wf(st, dt): return aK + 16 * st + 4 * dt
def Vf(u, t4): return aV + (u * 4 + t4) * 4
def Xf(st, ks, t): return aX + 32 * st + (ks * 2 + t) * 4
ZB = a(aZ, 4)
sX, sW, sK, sV, sO = 4, 8, 12, 16, 20
sWv = 24
sMode = 25
sHead = 26
sKm0, sKm1, sVm0, sVm1 = 27, 28, 29, 30
sWm, sXm = 31, 32
sG, sGp, sD = 33, 34, 35
sKso, sVso = 58, 59
sCnt = 60
sBey = 61
sT0, sT1, sT2, sT3 = 62, 63, 64, 65
sWso, sXso0, sXso1 = 66, 67, 68
sGq, sDq, sKq0, sKq1, sKqso = 69, 70, 71, 72, 73
sBad = 74
sXm2 = 76
sOso = 77
sHp = 78
sVlim = 79
sXe0, sXe1, sXem = 80, 81, 82
sWoo = 83
sWo = 84
LK, LV, LW, LEND = 0, 65536, 131072, 163840
OOB = 0x40000000
CSCALE = 0.12751743

def f2u(x):
    import struct
    return struct.unpack("<I", struct.pack("<f", x))[0]

def zero_mfma(reg, agpr=False):
    return "%s %s, %s, %s, 0" % (MF32, (a if agpr else v)(reg, 16), ZB, ZB)

POL = {}
def pol(srd):
    p = POL.get(srd, "")
    return (" " + p.replace("_", " ")) if p else ""
def dma(vo, srd, so, off=0, nt=False):
    return "buffer_load_dwordx4 %s, %s, %s offen%s%s lds" % (v(vo), s(srd, 4), s(so) if isinstance(so, int) else so, " offset:%d" % off if off else "", pol(srd))

STAMP_OFF = 0x8000000
def stamp(e, name, lvl=1):
    if e.o.get("stamps", 0) < lvl: return
    e("s_memtime s[98:99]")
    e("s_waitcnt lgkmcnt(0)")
    e("s_mov_b32 m0, s97")
    e("v_writelane_b32 v1, s98, m0 ; stamp=%s" % name)
    e("s_add_u32 s97, s97, 1")
def stamp_entry(e):
    if not e.o.get("stamps"): return
    e("s_memtime s[98:99]")
    e("s_memrealtime s[100:101]")
    e("s_waitcnt lgkmcnt(0)")
    e("s_mov_b32 s97, 2")
    e("v_mov_b32 v1, 0")
    e("s_mov_b32 s96, s100")
    e("v_writelane_b32 v1, s98, 0")
def stamp_write(e, wsreg, off=STAMP_OFF):
    if not e.o.get("stamps"): return
    stamp(e, "end")
    e("s_memrealtime s[100:101]")
    e("s_waitcnt lgkmcnt(0)")
    e("s_sub_u32 s100, s100, s96")
    e("v_writelane_b32 v1, s100, 1")
    e("v_writelane_b32 v1, s96, 63")
    e("v_lshlrev_b32 v2, 2, v0")
    e("s_lshl_b32 s3, s2, 10")
    e("s_add_u32 s3, s3, 0x%x" % off)
    e("v_add_u32 v2, s3, v2")
    e("global_store_dword v2, v1, %s" % s(wsreg, 2))
    e("s_waitcnt vmcnt(0)")

def k1_init(e):
    o = e.o
    e("s_cmp_ge_u32 s2, 256")
    e("s_cbranch_scc1 L1_end")
    stamp_entry(e)
    e("s_mov_b32 %s, 0" % s(sMode))
    e("L1_again:")
    e("s_load_dwordx16 s[36:51], s[0:1], 0")
    e("s_load_dwordx4 s[52:55], s[0:1], 64")
    e("s_load_dwordx2 s[56:57], s[0:1], 96")
    l, g, i, t0, t1, t2 = vT, vT + 1, vT + 2, vT + 3, vT + 4, vT + 5
    e("v_and_b32 %s, 63, v0" % v(l))
    e("v_lshrrev_b32 %s, 6, v0" % v(t0))
    e("v_lshrrev_b32 %s, 4, %s" % (v(g), v(l)))
    e("v_readfirstlane_b32 %s, %s" % (s(sWv), v(t0)))
    e("v_and_b32 %s, 15, %s" % (v(i), v(l)))
    e("s_lshr_b32 s3, s2, 3")
    e("s_and_b32 %s, s3, 3" % s(sT0))
    e("s_and_b32 %s, s2, 1" % s(sT1))
    e("s_lshl_b32 %s, %s, 2" % (s(sT1), s(sT1)))
    e("s_add_u32 %s, %s, %s" % (s(sT0), s(sT0), s(sT1)))
    e("s_lshr_b32 %s, s3, 2" % s(sT1))
    e("s_and_b32 %s, s2, 2" % s(sT2))
    e("s_lshl_b32 %s, %s, 2" % (s(sT2), s(sT2)))
    e("s_add_u32 %s, %s, %s" % (s(sHp), s(sT1), s(sT2)))
    e("s_lshl_b32 %s, %s, 11" % (s(sKm0), s(sWv)))
    e("s_add_u32 %s, %s, 8192" % (s(sKm1), s(sKm0)))
    e("s_add_u32 %s, %s, %d" % (s(sVm1), s(sKm0), LV))
    e("s_add_u32 %s, %s, 8192" % (s(sVm0), s(sVm1)))
    e("s_lshl_b32 %s, %s, 12" % (s(sWm), s(sWv)))
    e("s_add_u32 %s, %s, %d" % (s(sWm), s(sWm), LW))
    e("s_lshl_b32 %s, %s, 13" % (s(sXm), s(sWv)))
    e("s_add_u32 %s, %s, %d" % (s(sXm), s(sXm), LV))
    e("s_mov_b32 %s, %d" % (s(sBey), LEND))
    e("v_lshlrev_b32 %s, 2, %s" % (v(t0), v(g)))
    e("v_xor_b32 %s, %s, %s" % (v(t0), v(i), v(t0)))
    e("v_lshlrev_b32 %s, 4, %s" % (v(t0), v(t0)))
    e("s_lshl_b32 %s, %s, 17" % (s(sT1), s(sWv)))
    e("v_lshl_add_u32 %s, %s, 13, %s" % (v(t1), v(g), v(t0)))
    e("v_add_u32 %s, %s, %s" % (v(vWD), s(sT1), v(t1)))
    for n in range(1, 4): e("v_add_u32 %s, %d, %s" % (v(vWD + n), n * (32768 - 1024), v(vWD)))
    e("v_lshl_add_u32 %s, %s, 8, %s" % (v(t1), v(g), v(t0)))
    e("v_add_u32 %s, %s, %s" % (v(vVD), s(sKm0), v(t1)))
    e("v_and_b32 %s, 7, %s" % (v(t0), v(l)))
    e("v_xor_b32 %s, %s, %s" % (v(t0), v(t0), v(g)))
    e("v_lshlrev_b32 %s, 4, %s" % (v(t0), v(t0)))
    e("v_lshrrev_b32 %s, 3, %s" % (v(t1), v(l)))
    e("v_lshl_add_u32 %s, %s, 10, %s" % (v(t1), v(t1), v(t0)))
    e("s_lshl_b32 %s, %s, 16" % (s(sT1), s(sWv)))
    e("v_add_u32 %s, %s, %s" % (v(vXD), s(sT1), v(t1)))
    e("v_xor_b32 %s, 64, %s" % (v(t2), v(vXD)))
    e("v_add_u32 %s, %d, %s" % (v(vXD + 1), 7168, v(t2)))
    e("v_add_u32 %s, %d, %s" % (v(vXD + 2), 2 * 7168, v(vXD)))
    e("v_add_u32 %s, %d, %s" % (v(vXD + 3), 3 * 7168, v(t2)))
    e("s_waitcnt lgkmcnt(0)")
    e("s_bitcmp1_b32 s2, 2")
    e("s_cselect_b64 s[36:37], s[46:47], s[36:37]")
    e("s_cselect_b64 s[38:39], s[48:49], s[38:39]")
    e("s_cselect_b64 s[40:41], s[50:51], s[40:41]")
    e("s_cselect_b64 s[42:43], s[52:53], s[42:43]")
    e("s_cselect_b32 %s, 8, 0" % s(sT3))
    e("s_lshl_b32 %s, %s, 9" % (s(sT1), s(sHp)))
    e("s_add_u32 %s, s42, %s" % (s(sW), s(sT1)))
    e("s_addc_u32 %s, s43, 0" % s(sW + 1))
    e("s_sub_u32 %s, %d, %s" % (s(sW + 2), 512 * 8192, s(sT1)))
    e("s_mov_b32 %s, 0x20000" % s(sW + 3))
    e("s_mul_i32 %s, %s, 245760" % (s(sT1), s(sT0)))
    e("s_add_u32 %s, s36, %s" % (s(sX), s(sT1)))
    e("s_addc_u32 %s, s37, 0" % s(sX + 1))
    e("s_mov_b32 %s, 245760" % s(sX + 2))
    e("s_mov_b32 %s, 0x20000" % s(sX + 3))
    e("s_mov_b32 %s, 0" % s(sWso))
    e("s_mov_b32 m0, %s" % s(sWm))
    e("s_mov_b32 %s, 0" % s(sXso0))
    for n in range(4): e(dma(vWD + n, sW, sWso, n * 1024))
    e("s_mov_b32 %s, 32768" % s(sXso1))
    for u in range(2):
        for m in range(2):
            e("s_add_u32 m0, %s, %d" % (s(sXm), u * 32768 + m * 4096))
            e("s_add_u32 %s, %s, %d" % (s(sT1), s(sXso0 + m), u * 128))
            for n in range(4): e(dma(vXD + n, sX, sT1, n * 1024))
    e("s_add_u32 m0, %s, 16384" % s(sWm))
    e("s_mov_b32 %s, 524288" % s(sWso))
    for n in range(4): e(dma(vWD + n, sW, sWso, n * 1024))
    e("s_lshl_b32 %s, %s, 5" % (s(sT1), s(sT0)))
    e("s_lshl_b32 %s, %s, 1" % (s(sT2), s(sHp)))
    e("s_add_u32 %s, %s, %s" % (s(sT1), s(sT1), s(sT2)))
    e("s_lshl_b32 %s, %s, 17" % (s(sT1), s(sT1)))
    e("s_add_u32 %s, s38, %s" % (s(sK), s(sT1)))
    e("s_addc_u32 %s, s39, 0" % s(sK + 1))
    e("s_mov_b32 %s, 262144" % s(sK + 2))
    e("s_mov_b32 %s, 0x20000" % s(sK + 3))
    e("s_add_u32 %s, s40, %s" % (s(sV), s(sT1)))
    e("s_addc_u32 %s, s41, 0" % s(sV + 1))
    e("s_mov_b32 %s, 131072" % s(sV + 2))
    e("s_mov_b32 %s, 0x20000" % s(sV + 3))
    e("s_add_u32 %s, %s, %s" % (s(sT1), s(sT3), s(sT0)))
    e("s_lshl_b32 %s, %s, 21" % (s(sT1), s(sT1)))
    e("s_add_u32 %s, s56, %s" % (s(sO), s(sT1)))
    e("s_addc_u32 %s, s57, 0" % s(sO + 1))
    e("s_mov_b32 %s, 2097152" % s(sO + 2))
    e("s_mov_b32 %s, 0x20000" % s(sO + 3))
    if o.get("warmo", 1):
        e("s_bitcmp1_b32 s2, 2")
        e("s_cselect_b64 s[44:45], s[54:55], s[44:45]")
        e("s_mov_b32 %s, s44" % s(sWo))
        e("s_mov_b32 %s, s45" % s(sWo + 1))
        e("s_mov_b32 %s, %d" % (s(sWo + 2), 4096 * 1024))
        e("s_mov_b32 %s, 0x20000" % s(sWo + 3))
        e("s_and_b32 %s, s2, 3" % s(sT1))
        e("s_lshl_b32 %s, %s, 5" % (s(sT1), s(sT1)))
        e("s_lshr_b32 %s, s2, 3" % s(sT2))
        e("s_add_u32 %s, %s, %s" % (s(sT1), s(sT1), s(sT2)))
        e("s_lshl_b32 %s, %s, 2" % (s(sT1), s(sT1)))
        e("s_add_u32 %s, %s, %s" % (s(sT1), s(sT1), s(sWv)))
        e("s_lshl_b32 %s, %s, 13" % (s(sWoo), s(sT1)))
    if o.get("warmi", 0):
        e("v_lshlrev_b32 %s, 10, %s" % (v(t0), v(l)))
        e("s_lshl_b32 %s, %s, 16" % (s(sT1), s(sWv)))
        for n in range(3, 8): e("buffer_load_dword %s, %s, %s, %s offen offset:%d%s ; nochk" % (v(vS0 + n), v(t0), s(sX, 4), s(sT1), n * 128, pol(sX)))
        e("v_lshrrev_b32 %s, 1, %s" % (v(t1), v(l)))
        e("v_and_b32 %s, 1, %s" % (v(t2), v(l)))
        e("v_lshlrev_b32 %s, 7, %s" % (v(t2), v(t2)))
        e("v_lshl_add_u32 %s, %s, 13, %s" % (v(vT + 6), v(t1), v(t2)))
        e("s_mul_i32 %s, %s, %d" % (s(sT1), s(sWv), 96 * 8192))
        for n in range(3):
            e("s_add_u32 %s, %s, %d" % (s(sT2), s(sT1), (128 + 32 * n) * 8192))
            e("buffer_load_dword %s, %s, %s, %s offen%s ; nochk" % (v(vS0 + 8 + n), v(vT + 6), s(sW, 4), s(sT2), pol(sW)))
    e("s_and_b32 %s, %s, 1" % (s(sT1), s(sWv)))
    e("s_lshl_b32 %s, %s, 3" % (s(sT1), s(sT1)))
    e("v_or_b32 %s, %s, %s" % (v(t0), s(sT1), v(g)))
    e("v_xor_b32 %s, %s, %s" % (v(t0), v(i), v(t0)))
    e("v_lshlrev_b32 %s, 4, %s" % (v(t0), v(t0)))
    e("v_lshl_add_u32 %s, %s, 8, %s" % (v(t0), v(g), v(t0)))
    e("v_add_u32 %s, %s, %s" % (v(vKD), s(sKm0), v(t0)))
    e("v_xor_b32 %s, 64, %s" % (v(vKD + 1), v(vKD)))
    e("v_and_b32 %s, 0x13, %s" % (v(t0), v(l)))
    e("v_and_b32 %s, 4, %s" % (v(t1), v(l)))
    e("v_lshl_or_b32 %s, %s, 1, %s" % (v(t0), v(t1), v(t0)))
    e("v_and_b32 %s, 8, %s" % (v(t1), v(l)))
    e("v_lshrrev_b32 %s, 1, %s" % (v(t1), v(t1)))
    e("v_or_b32 %s, %s, %s" % (v(t0), v(t0), v(t1)))
    e("v_and_b32 %s, 15, %s" % (v(t1), v(t0)))
    e("v_lshrrev_b32 %s, 5, %s" % (v(t2), v(l)))
    e("v_xor_b32 %s, %s, %s" % (v(t1), v(t1), v(t2)))
    e("v_lshlrev_b32 %s, 4, %s" % (v(t1), v(t1)))
    e("v_lshl_or_b32 %s, %s, 8, %s" % (v(vKA), v(t0), v(t1)))
    for ks in range(1, 8): e("v_xor_b32 %s, %d, %s" % (v(vKA + ks), ks << 5, v(vKA)))
    e("v_bfe_u32 %s, %s, 2, 2" % (v(t0), v(l)))
    e("v_lshl_add_u32 %s, %s, 3, %s" % (v(t1), v(t2), v(t0)))
    e("v_lshlrev_b32 %s, 8, %s" % (v(t1), v(t1)))
    e("v_lshl_or_b32 %s, %s, 6, %s" % (v(t1), v(t0), v(t1)))
    e("v_bfe_u32 %s, %s, 4, 1" % (v(t0), v(l)))
    e("v_lshl_or_b32 %s, %s, 5, %s" % (v(t1), v(t0), v(t1)))
    e("v_and_b32 %s, 1, %s" % (v(t0), v(l)))
    e("v_lshl_or_b32 %s, %s, 4, %s" % (v(t1), v(t0), v(t1)))
    e("v_bfe_u32 %s, %s, 1, 1" % (v(t0), v(l)))
    e("v_lshl_or_b32 %s, %s, 3, %s" % (v(t1), v(t0), v(t1)))
    e("v_add_u32 %s, %d, %s" % (v(vVA), LV, v(t1)))
    e("v_add_u32 %s, %d, %s" % (v(vWA), LW, v(t1)))
    for t in range(1, 4):
        e("v_xor_b32 %s, %d, %s" % (v(vVA + t), t << 6, v(vVA)))
        e("v_xor_b32 %s, %d, %s" % (v(vWA + t), t << 6, v(vWA)))
    e("v_bfe_u32 %s, %s, 1, 3" % (v(t0), v(l)))
    e("v_xor_b32 %s, %s, %s" % (v(t0), v(t0), v(t2)))
    e("v_lshlrev_b32 %s, 4, %s" % (v(t0), v(t0)))
    e("v_and_b32 %s, 31, %s" % (v(t1), v(l)))
    e("v_lshl_or_b32 %s, %s, 7, %s" % (v(t0), v(t1), v(t0)))
    e("v_add_u32 %s, %s, %s" % (v(vXA), s(sXm), v(t0)))
    for ks in range(1, 4): e("v_xor_b32 %s, %d, %s" % (v(vXA + ks), ks << 5, v(vXA)))
    e("v_lshlrev_b32 %s, 4, %s" % (v(vST), v(l)))
    for k in range(4): e("v_accvgpr_write_b32 %s, 0" % a(aZ + k))
    e("s_mov_b32 %s, 0" % s(sHead))
    e("s_mov_b64 %s, 0" % s(sBad, 2))
    for t in range(8): e(zero_mfma(vO + 16 * t))
    e(zero_mfma(vC0)); e(zero_mfma(vC1))
    e("s_mov_b32 %s, %s" % (s(sKq0), s(sKm0)))
    e("s_mov_b32 %s, %s" % (s(sKq1), s(sKm1)))
    e("s_mov_b32 %s, 0" % s(sKqso))
    e(e.wait("init_x0", vm=True))

def w_reads(buf, ks, st):
    r = []
    for dt in range(4):
        r.append(["ds_read_b64_tr_b16 %s, %s offset:%d" % (a(Wf(st, dt) + 2 * i2, 2), v(vWA + dt), buf * 16384 + ks * 4096 + i2 * 1024) for i2 in range(2)])
    return r

def x_reads(buf, st):
    r = []
    for ks in range(4):
        for t in range(2):
            r.append("ds_read_b128 %s, %s offset:%d" % (a(Xf(st, ks, t), 4), v(vXA + ks), buf * 32768 + t * 4096))
    return r

def x_dmas(buf):
    g = []
    for m in range(2):
        pre = ["s_add_u32 m0, %s, %d" % (s(sXm), buf * 32768 + m * 4096)]
        d = [dma(vXD + n, sX, sXso0 + m, n * 1024) for n in range(4)]
        g.append(pre + ["s_nop 0", d[0], d[1]] if False else (pre, d))
    return g

def q_unit(e, u, kind):
    p = u & 1
    tag = "q%s" % kind["tag"]
    stamp(e, "u" + kind["tag"], 2)
    for ks in range(4):
        st = ks & 1
        mf = ["%s %s, %s, %s, %s" % (MF32, v(Ot(j >> 1, j & 1), 16), a(Wf(st, j >> 1), 4), a(Xf(p, ks, j & 1), 4), v(Ot(j >> 1, j & 1), 16)) for j in range(8)]
        gaps = [[] for _ in range(8)]
        pre = []
        if ks == 3:
            pre = [e.wait(tag + "k3", vm=True, lg=True), "s_barrier"]
            if "q:bar" in e.o.get("ablate", ""): pre = pre[:1]
        else:
            pre = [e.wait(tag + "k%d" % ks, lg=True)]
        if ks < 3: wr = w_reads(p, ks + 1, st ^ 1)
        elif kind.get("wnext", True): wr = w_reads(p ^ 1, 0, st ^ 1)
        else: wr = None
        if wr:
            for dt in range(4): gaps[dt] += wr[dt]
        if ks == 0 and kind.get("kpair"):
            gaps[3] += ["s_add_u32 m0, %s, %s" % (s(sGq), s(sKq0))]
            gaps[4] += [dma(vKD, sK, sKqso, 0, nt=True), "s_add_u32 %s, %s, 8192" % (s(sT0), s(sKqso))]
            gaps[5] += [dma(vKD + 1, sK, sKqso, 1024, nt=True), "s_add_u32 m0, %s, %s" % (s(sGq), s(sKq1))]
            gaps[6] += ["s_add_u32 %s, %s, 16384" % (s(sKqso), s(sKqso)), dma(vKD, sK, sT0, 0, nt=True), "s_xor_b32 %s, %s, %s" % (s(sGq), s(sGq), s(sDq))]
            gaps[7] += [dma(vKD + 1, sK, sT0, 1024, nt=True), "s_xor_b32 %s, %s, 49152" % (s(sDq), s(sDq))]
        if ks == 1 and kind.get("xread", True):
            xr = x_reads(p ^ 1, p ^ 1)
            gaps[3] += [e.wait(tag + "x", vm=True)]
            for j in range(4): gaps[4 + j] += xr[2 * j: 2 * j + 2]
        if ks == 2 and kind.get("xdma"):
            g = x_dmas(p ^ 1)
            gaps[3] += [g[0][0][0]]
            gaps[4] += [e.wait(tag + "xw", lg=True), g[0][1][0], g[0][1][1]]
            gaps[5] += [g[0][1][2], g[0][1][3], g[1][0][0]]
            gaps[6] += ["s_add_u32 %s, %s, 128" % (s(sXso0), s(sXso0)), g[1][1][0], g[1][1][1]]
            gaps[7] += [g[1][1][2], g[1][1][3], "s_add_u32 %s, %s, 128" % (s(sXso1), s(sXso1))]
        if ks == 2 and kind.get("vset") is not None:
            vs = kind["vset"]
            if vs == 0:
                gaps[0] += ["s_mul_i32 %s, %s, 6144" % (s(sT0), s(sWv))]
                gaps[1] += ["s_lshl_b32 %s, %s, 17" % (s(sT2), s(sHead))]
                gaps[2] += ["s_add_u32 %s, %s, %s" % (s(sT0), s(sT0), s(sT2)), "s_mov_b32 %s, %s" % (s(sT1), s(sXm))]
            else:
                gaps[0] += ["s_xor_b32 %s, %s, 2" % (s(sT0), s(sWv)), "s_lshl_b32 %s, %s, 13" % (s(sT0), s(sT0))]
                gaps[1] += ["s_lshl_b32 %s, %s, 17" % (s(sT2), s(sHead)), "s_add_u32 %s, %s, 32768" % (s(sT2), s(sT2)), "s_sub_u32 %s, %s, %s" % (s(sT2), s(sT2), s(sKm0))]
                gaps[2] += ["s_add_u32 %s, %s, %s" % (s(sT0), s(sT0), s(sT2)), "s_add_u32 %s, %s, 32768" % (s(sT1), s(sXm)), "s_cmp_eq_u32 %s, 1" % s(sWv),
                            "s_cselect_b32 %s, %d, %s" % (s(sT0), OOB, s(sT0)), "s_cselect_b32 %s, %s, %s" % (s(sT1), s(sBey), s(sT1))]
            gaps[3] += ["s_mov_b32 m0, %s" % s(sT1), "s_add_u32 %s, %s, 4096" % (s(sT2), s(sT0))]
            d0 = [dma(vVD, sV, sT0, n * 1024, nt=True) for n in range(4)]
            d1 = [dma(vVD, sV, sT2, n * 1024, nt=True) for n in range(4)]
            gaps[4] += [e.wait(tag + "vw", lg=True), d0[0], d0[1]]
            gaps[5] += [d0[2], d0[3], "s_add_u32 m0, %s, 4096" % s(sT1)]
            gaps[6] += ["s_nop 0", d1[0], d1[1]]
            gaps[7] += [d1[2], d1[3]]
        if ks == 3:
            if kind.get("wnexthead") == 0:
                gaps[2] += ["s_cmp_eq_u32 %s, 0" % s(sHead), "s_cselect_b32 %s, 256, %d" % (s(sWso), OOB)]
            gaps[3] += ["s_add_u32 m0, %s, %d" % (s(sWm), p * 16384)]
            for n in range(4): gaps[4 + n] += [dma(vWD + n, sW, sWso, n * 1024)]
            gaps[7] += ["s_add_u32 %s, %s, 524288" % (s(sWso), s(sWso))]
        e.all(pre)
        weave(e, mf, gaps)

def q_phase(e):
    e.phase = "q"
    e("L1_head:")
    stamp(e, "head")
    e("s_barrier")
    for l in x_reads(0, 0): e(l)
    for pr in w_reads(0, 0, 0): e.all(pr)
    e("s_mov_b32 %s, %d" % (s(sXso0), 2 * 128))
    e("s_mov_b32 %s, %d" % (s(sXso1), 2 * 128 + 32768))
    e("s_lshl_b32 %s, %s, 8" % (s(sWso), s(sHead)))
    e("s_add_u32 %s, %s, %d" % (s(sWso), s(sWso), 2 * 524288))
    e("s_mov_b32 %s, 0" % s(sGq))
    e("s_mov_b32 %s, 16384" % s(sDq))
    e("s_mov_b32 %s, 2" % s(sCnt))
    g = x_dmas(0)
    e(g[0][0][0])
    e(e.wait("qpro_x", lg=True))
    e.all(g[0][1]); e(g[1][0][0]); e("s_add_u32 %s, %s, 128" % (s(sXso0), s(sXso0))); e.all(g[1][1])
    e("s_add_u32 %s, %s, 128" % (s(sXso1), s(sXso1)))
    e("L1_qloop:")
    q_unit(e, 0, dict(tag="a", kpair=True, xdma=True))
    q_unit(e, 1, dict(tag="b", kpair=True, xdma=True))
    e("s_sub_u32 %s, %s, 1" % (s(sCnt), s(sCnt)))
    e("s_cmp_lg_u32 %s, 0" % s(sCnt))
    e("s_cbranch_scc1 L1_qloop")
    q_unit(e, 4, dict(tag="4", xdma=True))
    q_unit(e, 5, dict(tag="5", vset=0))
    q_unit(e, 6, dict(tag="6", vset=1, wnexthead=0))
    q_unit(e, 7, dict(tag="7", xread=False, wnext=False))

def q_epilogue(e):
    cs = vT
    e("v_mov_b32 %s, 0x%x" % (v(cs), f2u(CSCALE)))
    e("v_mov_b32 %s, 0x%x" % (v(cs + 1), f2u(CSCALE)))
    e("s_nop 7")
    k = 0
    for t in range(2):
        for dt in range(4):
            base = Ot(dt, t)
            T = vS0 + 8 * (k % 4); k += 1
            for j in range(8): e("v_pk_mul_f32 %s, %s, %s" % (v(base + 2 * j, 2), v(base + 2 * j, 2), v(cs, 2)))
            for j in range(8): e("v_cvt_pk_bf16_f32 %s, %s, %s" % (v(T + j), v(base + 2 * j), v(base + 2 * j + 1)))
            for j in range(8): e("v_accvgpr_write_b32 %s, %s" % (a(Qf(2 * dt + (j >> 2), t) + (j & 3)), v(T + j)))
            e(zero_mfma(base))

def max_prepass(e):
    e("s_cmp_eq_u32 %s, 0" % s(sMode))
    e("s_cbranch_scc1 L1_nomax")
    t0, t1, m0_, m1_ = vT, vT + 1, vT + 2, vT + 3
    e("v_and_b32 %s, 63, v0" % v(t1))
    e("v_and_b32 %s, 0x13, %s" % (v(t0), v(t1)))
    e("v_and_b32 %s, 4, %s" % (v(vT + 4), v(t1)))
    e("v_lshl_or_b32 %s, %s, 1, %s" % (v(t0), v(vT + 4), v(t0)))
    e("v_and_b32 %s, 8, %s" % (v(vT + 4), v(t1)))
    e("v_lshrrev_b32 %s, 1, %s" % (v(vT + 4), v(vT + 4)))
    e("v_or_b32 %s, %s, %s" % (v(t0), v(t0), v(vT + 4)))
    e("v_lshrrev_b32 %s, 5, %s" % (v(t1), v(t1)))
    e("v_lshlrev_b32 %s, 4, %s" % (v(t1), v(t1)))
    e("v_lshl_or_b32 %s, %s, 8, %s" % (v(t0), v(t0), v(t1)))
    e("v_mov_b32 %s, 0xff800000" % v(m0_))
    e("v_mov_b32 %s, 0xff800000" % v(m1_))
    e("s_lshl_b32 %s, %s, 17" % (s(sT0), s(sHead)))
    e("s_mov_b32 %s, 16" % s(sCnt))
    e("L1_maxloop:")
    for ks in range(8): e("buffer_load_dwordx4 %s, %s, %s, %s offen offset:%d" % (a(Kf(ks), 4), v(t0), s(sK, 4), s(sT0), ks * 32))
    e("s_waitcnt vmcnt(0)")
    for t in range(2):
        S = vS0 if t == 0 else vS1
        for ks in range(8): e("%s %s, %s, %s, %s" % (MF32, v(S, 16), a(Kf(ks), 4), a(Qf(ks, t), 4), "0" if ks == 0 else v(S, 16)))
    e("s_nop 15")
    for t in range(2):
        S = vS0 if t == 0 else vS1; m = m0_ if t == 0 else m1_
        for j in range(8): e("v_max3_f32 %s, %s, %s, %s" % (v(m), v(S + 2 * j), v(S + 2 * j + 1), v(m)))
    e("s_add_u32 %s, %s, 8192" % (s(sT0), s(sT0)))
    e("s_sub_u32 %s, %s, 1" % (s(sCnt), s(sCnt)))
    e("s_cmp_lg_u32 %s, 0" % s(sCnt))
    e("s_cbranch_scc1 L1_maxloop")
    for t in range(2):
        m = m0_ if t == 0 else m1_; C = vC0 if t == 0 else vC1
        e("v_mov_b32 %s, %s" % (v(vT + 4), v(m)))
        e("s_nop 1")
        e("v_permlane32_swap_b32 %s, %s" % (v(vT + 4), v(m)))
        e("s_nop 1")
        e("v_max_f32 %s, %s, %s" % (v(m), v(m), v(vT + 4)))
        for j in range(16): e("v_sub_f32 %s, 0, %s" % (v(C + j), v(m)))
    e("L1_nomax:")

def sm_pos(S, P, L, pos):
    r = []
    if pos < 16: r.append("v_exp_f32 %s, %s" % (v(S + pos), v(S + pos)))
    if pos >= 1: r.append("v_add_f32 %s, %s, %s" % (v(L), v(L), v(S + pos - 1)))
    if pos >= 2 and pos % 2 == 0:
        k = pos // 2 - 1
        r.append("v_cvt_pk_bf16_f32 %s, %s, %s" % (v(P + k), v(S + 2 * k), v(S + 2 * k + 1)))
    return r
def smA(pos): return sm_pos(vS0, vP0, vL0, pos)
def smB(pos): return sm_pos(vS1, vP1, vL1, pos)

def pv_mf(t):
    P = vP0 if t == 0 else vP1
    return ["%s %s, %s, %s, %s" % (MF32, v(Ot(j & 3, t), 16), a(Vf(j >> 2, j & 3), 4), v(P + 4 * (j >> 2), 4), v(Ot(j & 3, t), 16)) for j in range(8)]
def qk_mf(t):
    S = vS0 if t == 0 else vS1; C = vC0 if t == 0 else vC1
    return ["%s %s, %s, %s, %s" % (MF32, v(S, 16), a(Kf(ks), 4), a(Qf(ks, t), 4), v(C if ks == 0 else S, 16)) for ks in range(8)]

def att_step(e, par):
    e.phase = "att"
    tag = "s%d" % par
    gaps = [[] for _ in range(8)]
    for j in range(8):
        if j < 2: gaps[j] += smB(14 + j)
        elif j == 2: gaps[j] += smA(0) + smB(16)
        else: gaps[j] += smA(j - 2)
        u, t4 = j >> 2, j & 3
        for i2 in range(2):
            gaps[j].append("ds_read_b64_tr_b16 %s, %s offset:%d" % (a(Vf(u, t4) + 2 * i2, 2), v(vVA + t4), par * 8192 + u * 4096 + i2 * 1024))
    weave(e, pv_mf(1), gaps)
    e(e.wait(tag + "B", vm=True))
    if "att:bar" not in e.o.get("ablate", ""): e("s_barrier")
    gaps = [[] for _ in range(8)]
    for j in range(8):
        gaps[j] += smA(6 + j)
        gaps[j].append("ds_read_b128 %s, %s offset:%d" % (a(Kf(j), 4), v(vKA + j), 8192 if par == 0 else 0))
        if par == 1 and j % 2 == 1: gaps[j].append("v_xor_b32 %s, %s, %s" % (v(vVA + (j >> 1)), s(sD), v(vVA + (j >> 1))))
    weave(e, qk_mf(1), gaps)
    e(e.wait(tag + "G3", lg=True))
    gaps = [[] for _ in range(8)]
    for j in range(8):
        if j < 2: gaps[j] += smA(14 + j)
        elif j == 2: gaps[j] += smB(0) + smA(16)
        else: gaps[j] += smB(j - 2)
    gaps[1] += ["s_add_u32 m0, %s, %s" % (s(sG), s(sKm0 + par))]
    gaps[3] += [dma(vKD, sK, sKso, 0, nt=True)]
    gaps[5] += [dma(vKD + 1, sK, sKso, 1024, nt=True)]
    gaps[6] += ["s_add_u32 %s, %s, 8192" % (s(sKso), s(sKso))]
    gaps[7] += ["s_add_u32 %s, %s, %s" % (s(sT0), s(sGp if par == 0 else sG), s(sVm0 + par)), "s_cmp_lt_u32 %s, %s" % (s(sVso), s(sVlim))]
    weave(e, pv_mf(0), gaps)
    e(e.wait(tag + "G0", lg=True))
    gaps = [[] for _ in range(8)]
    for j in range(8): gaps[j] += smB(6 + j)
    gaps[0] = ["s_cselect_b32 m0, %s, %s" % (s(sT0), s(sBey))] + gaps[0]
    gaps[1] += [dma(vVD, sV, sVso, 0, nt=True)]
    gaps[3] += [dma(vVD, sV, sVso, 1024, nt=True)]
    gaps[4] += ["s_add_u32 %s, %s, 8192" % (s(sVso), s(sVso))]
    if par == 0:
        for j in range(8): gaps[j].append("v_xor_b32 %s, %s, %s" % (v(vKA + j), s(sD), v(vKA + j)))
    else:
        gaps[5] += ["s_mov_b32 %s, %s" % (s(sGp), s(sG)), "s_xor_b32 %s, %s, %s" % (s(sG), s(sG), s(sD))]
        gaps[6] += ["s_xor_b32 %s, %s, 49152" % (s(sD), s(sD))]
        gaps[7] += ["s_sub_u32 %s, %s, 1" % (s(sCnt), s(sCnt)), "s_cmp_lg_u32 %s, 0" % s(sCnt)]
    weave(e, qk_mf(0), gaps)

def attention(e):
    o = e.o
    e(e.wait("apro", vm=True)); e("s_barrier")
    for ks in range(8): e("ds_read_b128 %s, %s" % (a(Kf(ks), 4), v(vKA + ks)))
    e(zero_mfma(aV, True)); e(zero_mfma(aV + 16, True))
    e("v_mov_b32 %s, 0" % v(vL0)); e("v_mov_b32 %s, 0" % v(vL1))
    for k in range(6): e("v_mov_b32 %s, 0" % v(vP1 + k))
    e("v_mov_b32 %s, 0" % v(vS1 + 12)); e("v_mov_b32 %s, 0" % v(vS1 + 13))
    e("v_mov_b32 %s, 0xff800000" % v(vS1 + 14)); e("v_mov_b32 %s, 0xff800000" % v(vS1 + 15))
    e("s_mov_b32 %s, 0" % s(sG))
    e("s_mov_b32 %s, 32768" % s(sGp))
    e("s_mov_b32 %s, 16384" % s(sD))
    e("s_lshl_b32 %s, %s, 17" % (s(sT0), s(sHead)))
    e("s_add_u32 %s, %s, %d" % (s(sKso), s(sT0), 8 * 8192))
    e("s_add_u32 %s, %s, %d" % (s(sVso), s(sT0), 7 * 8192))
    e("s_add_u32 %s, %s, 131072" % (s(sVlim), s(sT0)))
    e("s_mov_b32 %s, 8" % s(sCnt))
    if o.get("warmo", 1):
        e("v_and_b32 %s, 63, v0" % v(vT))
        e("v_lshlrev_b32 %s, 7, %s" % (v(vT), v(vT)))
        e("s_cmp_eq_u32 %s, %d" % (s(sHead), o.get("warmo", 1) - 1))
        e("s_cselect_b32 %s, %s, %d" % (s(sT2), s(sWoo), OOB))
        e("buffer_load_dword %s, %s, %s, %s offen%s ; nochk" % (v(vT + 11), v(vT), s(sWo, 4), s(sT2), pol(sWo)))
    if o.get("warmq", 1):
        e("v_and_b32 %s, 63, v0" % v(vT))
        e("v_lshrrev_b32 %s, 1, %s" % (v(vT + 1), v(vT)))
        e("v_and_b32 %s, 1, %s" % (v(vT), v(vT)))
        e("v_lshlrev_b32 %s, 7, %s" % (v(vT), v(vT)))
        e("v_lshl_add_u32 %s, %s, 13, %s" % (v(vT), v(vT + 1), v(vT)))
        e("s_mul_i32 %s, %s, %d" % (s(sT1), s(sWv), 96 * 8192))
        e("s_cmp_eq_u32 %s, 0" % s(sHead))
        e("s_cselect_b32 %s, 256, %d" % (s(sT2), OOB))
        e("s_add_u32 %s, %s, %s" % (s(sT1), s(sT1), s(sT2)))
        for n in range(3):
            e("s_add_u32 %s, %s, %d" % (s(sT2), s(sT1), (128 + 32 * n) * 8192))
            e("buffer_load_dword %s, %s, %s, %s offen%s ; nochk" % (v(vT + 8 + n), v(vT), s(sW, 4), s(sT2), pol(sW)))
    e(e.wait("apro_k", lg=True))
    weave(e, qk_mf(0), [[] for _ in range(8)])
    stamp(e, "Apro")
    e("L1_att:")
    stamp(e, "it", 3)
    att_step(e, 0)
    att_step(e, 1)
    e("s_cbranch_scc1 L1_att")
    e("s_barrier")
    e("s_cmp_eq_u32 %s, 0" % s(sHead))
    e("s_cselect_b32 %s, %s, %s" % (s(sXem), s(sXm), s(sBey)))
    e("s_cselect_b32 %s, 0, %d" % (s(sXe0), OOB))
    gaps = [[] for _ in range(8)]
    for j in range(3): gaps[j] += smB(14 + j)
    for q in range(4):
        u, m = q >> 1, q & 1
        gaps[2 * q] += ["s_add_u32 m0, %s, %d" % (s(sXem), u * 32768 + m * 4096), "s_add_u32 %s, %s, %d" % (s(sT0), s(sXe0), u * 128 + m * 32768)]
        d = [dma(vXD + n, sX, sT0, n * 1024) for n in range(4)]
        gaps[2 * q] += d[0:2]; gaps[2 * q + 1] += d[2:4]
    weave(e, pv_mf(1), gaps)

def o_epilogue(e):
    inv = [vT, vT + 2]; tmp = vT + 4; chk = vT + 8
    for t in range(2):
        L = vL0 if t == 0 else vL1
        e("v_mov_b32 %s, %s" % (v(tmp), v(L)))
        e("s_nop 1")
        e("v_permlane32_swap_b32 %s, %s" % (v(tmp), v(L)))
        e("s_nop 1")
        e("v_add_f32 %s, %s, %s" % (v(L), v(L), v(tmp)))
        e("v_cmp_nle_f32 vcc, 0x%x, %s" % (f2u(2.0 ** -16), v(L)))
        e("v_rcp_f32 %s, %s" % (v(inv[t]), v(L)))
        e("s_nop 2")
        e("s_or_b64 %s, %s, vcc" % (s(sBad, 2), s(sBad, 2)))
        e("v_cmp_nge_f32 vcc, 0x%x, %s" % (f2u(2.0 ** 64), v(L)))
        e("v_mov_b32 %s, %s" % (v(inv[t] + 1), v(inv[t])))
        e("s_nop 3")
        e("s_or_b64 %s, %s, vcc" % (s(sBad, 2), s(sBad, 2)))
    e("s_lshl_b32 %s, %s, 14" % (s(sOso), s(sWv)))
    e("s_lshl_b32 %s, %s, 1" % (s(sT0), s(sHp)))
    e("s_add_u32 %s, %s, %s" % (s(sT0), s(sT0), s(sHead)))
    e("s_lshl_b32 %s, %s, 16" % (s(sT0), s(sT0)))
    e("s_add_u32 %s, %s, %s" % (s(sOso), s(sOso), s(sT0)))
    k = 0; first = True
    for t in range(2):
        for t4 in range(4):
            base = Ot(t4, t)
            T = vS0 + 8 * (k % 6); k += 1
            if t4 == 0 and t == 1: e("s_add_u32 %s, %s, 8192" % (s(sOso), s(sOso)))
            if t4 % 2 == 0: e("s_add_u32 %s, %s, %d" % (s(sT0), s(sOso), (t4 >> 1) * 4096))
            for j in range(8): e("v_pk_mul_f32 %s, %s, %s" % (v(base + 2 * j, 2), v(base + 2 * j, 2), v(inv[t], 2)))
            for j in range(8): e("v_cvt_pk_bf16_f32 %s, %s, %s" % (v(T + j), v(base + 2 * j), v(base + 2 * j + 1)))
            e(zero_mfma(base))
            for u in range(2):
                e("buffer_store_dwordx4 %s, %s, %s, %s offen offset:%d%s" % (v(T + 4 * u, 4), v(vST), s(sO, 4), s(sT0), ((t4 & 1) * 2 + u) * 1024, pol(sO)))
            for u in range(2):
                e("%s %s, %s, %s, %s" % (MF16, v(chk, 4), ZB, v(T + 4 * u, 4), "0" if first else v(chk, 4))); first = False
    e("s_nop 7")
    e("v_cmp_u_f32 vcc, %s, %s" % (v(chk), v(chk)))
    e("s_nop 3")
    e("s_or_b64 %s, %s, vcc" % (s(sBad, 2), s(sBad, 2)))

def k1_tail(e):
    e("s_add_u32 %s, %s, 1" % (s(sHead), s(sHead)))
    e("s_cmp_eq_u32 %s, 2" % s(sHead))
    e("s_cbranch_scc1 L1_fin")
    e("s_mov_b32 %s, 262144" % s(sV + 2))
    e("s_mov_b32 %s, %s" % (s(sKq0), s(sBey)))
    e("s_mov_b32 %s, %s" % (s(sKq1), s(sBey)))
    e("s_mov_b32 %s, %d" % (s(sKqso), OOB))
    e(e.wait("head_x0", vm=True))
    e("s_branch L1_head")
    e("L1_fin:")
    stamp_write(e, 56)
    if e.o.get("ablate"): e("s_branch L1_end")
    e("s_cmp_lg_u32 %s, 0" % s(sMode))
    e("s_cbranch_scc1 L1_end")
    e("s_waitcnt vmcnt(0) lgkmcnt(0)")
    e("s_barrier")
    e("s_cmp_lg_u64 %s, 0" % s(sBad, 2))
    e("s_cselect_b32 %s, 1, 0" % s(sT0))
    e("v_mov_b32 %s, %s" % (v(vT), s(sT0)))
    e("s_lshl_b32 %s, %s, 2" % (s(sT1), s(sWv)))
    e("v_mov_b32 %s, %s" % (v(vT + 1), s(sT1)))
    e("ds_write_b32 %s, %s" % (v(vT + 1), v(vT)))
    e("s_waitcnt lgkmcnt(0)")
    e("s_barrier")
    e("v_mov_b32 %s, 0" % v(vT + 1))
    e("ds_read_b128 %s, %s" % (v(vT + 4, 4), v(vT + 1)))
    e("s_waitcnt lgkmcnt(0)")
    e("v_or3_b32 %s, %s, %s, %s" % (v(vT), v(vT + 4), v(vT + 5), v(vT + 6)))
    e("v_or_b32 %s, %s, %s" % (v(vT), v(vT), v(vT + 7)))
    e("s_nop 0")
    e("v_readfirstlane_b32 %s, %s" % (s(sT0), v(vT)))
    e("s_nop 3")
    e("s_cmp_eq_u32 %s, 0" % s(sT0))
    e("s_cbranch_scc1 L1_end")
    e("s_mov_b32 %s, 1" % s(sMode))
    e("s_barrier")
    e("s_branch L1_again")
    e("L1_end:")
    e("s_endpgm")

def k1(e, name):
    POL.clear()
    POL.update({sX: e.o.get("xpol", ""), sW: e.o.get("wpol", ""), sK: e.o.get("kvpol", "nt"), sV: e.o.get("kvpol", "nt"), sO: e.o.get("opol", "")})
    e(".text"); e(".globl %s" % name); e(".p2align 8"); e(".type %s,@function" % name); e("%s:" % name)
    k1_init(e)
    q_phase(e)
    stamp(e, "Qend")
    q_epilogue(e)
    max_prepass(e)
    stamp(e, "Qepi")
    attention(e)
    stamp(e, "Aend")
    o_epilogue(e)
    stamp(e, "Oepi")
    k1_tail(e)

def desc(e, name, vgpr, accum, sgpr=102):
    e('.section .rodata,"a"')
    e(".p2align 6")
    e(".amdhsa_kernel %s" % name)
    e("  .amdhsa_next_free_vgpr %d" % vgpr)
    e("  .amdhsa_next_free_sgpr %d" % sgpr)
    e("  .amdhsa_accum_offset %d" % accum)
    e("  .amdhsa_group_segment_fixed_size 0")
    e("  .amdhsa_kernarg_size 104")
    e("  .amdhsa_user_sgpr_count 2")
    e("  .amdhsa_user_sgpr_kernarg_segment_ptr 1")
    e("  .amdhsa_system_sgpr_workgroup_id_x 1")
    e(".end_amdhsa_kernel")

HDR = """; Kernarg (104 bytes): 0 A_x, 8 A_k_cache, 16 A_v_cache, 24 A_wq, 32 A_wo, 40 B_x, 48 B_k_cache,
"""
def gen_k1_only(solved, opts):
    e = Em(solved, opts)
    e(HDR.rstrip())
    e("; @launch grid=(256,1,1) block=(256,1,1) lds=163840")
    e('.amdgcn_target "amdgcn-amd-amdhsa--gfx950"')
    k1(e, NAME + "_kernel")
    desc(e, NAME + "_kernel", 512, 256)
    return e.text()

k2_vA = 2
k2_vOd = 6
k2_vWd = 7
k2_vT = 12
k2_acc = 32
k2_A = 64
k2_sO, k2_sW, k2_sOut = 4, 8, 12
k2_sWv, k2_sM, k2_sOo, k2_sOo2, k2_sWo, k2_sCnt = 16, 17, 18, 19, 20, 21
K2NS = 8
K2LDS = K2NS * 16384
def k2A(st, nt): return k2_A + (st * 2 + nt) * 4
def k2O(slot, ks): return (slot * 8 + ks) * 4

def k2_areads(slot, ks):
    st = ks & 3
    return ["ds_read_b64_tr_b16 %s, %s offset:%d" % (v(k2A(st, nt) + 2 * i2, 2), v(k2_vA + nt + 2 * (slot >> 2)), (slot & 3) * 16384 + ks * 2048 + i2 * 512) for nt in range(2) for i2 in range(2)]
def k2_oload(slot, ks, so1, so2):
    return "buffer_load_dwordx4 %s, %s, %s, %s offen offset:%d%s" % (a(k2O(slot, ks), 4), v(k2_vOd), s(k2_sO, 4), s(so1 if ks < 4 else so2), (ks & 3) * 1024, pol("k2o"))
def k2_wdma(n):
    return "buffer_load_dwordx4 %s, %s, %s offen offset:%d%s lds" % (v(k2_vWd + n), s(k2_sW, 4), s(k2_sWo), n * 1024, pol("k2w"))

def k2_setup(e):
    e("s_load_dwordx2 s[24:25], s[0:1], 32")
    e("s_load_dwordx2 s[26:27], s[0:1], 72")
    e("s_load_dwordx2 s[28:29], s[0:1], 80")
    e("s_load_dwordx2 s[30:31], s[0:1], 96")
    l, t0, t1, t2 = k2_vT, k2_vT + 1, k2_vT + 2, k2_vT + 3
    e("v_and_b32 %s, 63, v0" % v(l))
    e("v_lshrrev_b32 %s, 6, v0" % v(t0))
    e("v_lshlrev_b32 %s, 4, %s" % (v(k2_vOd), v(l)))
    e("v_readfirstlane_b32 %s, %s" % (s(k2_sWv), v(t0)))
    e("s_lshr_b32 s3, s2, 3")
    e("s_and_b32 s32, s2, 3"); e("s_lshl_b32 s32, s32, 1"); e("s_and_b32 s33, s3, 1"); e("s_add_u32 s32, s32, s33")
    e("s_bfe_u32 s33, s3, 0x10001")
    e("s_lshr_b32 s34, s3, 2")
    e("s_bfe_u32 s35, s2, 0x10002")
    e("v_lshrrev_b32 %s, 3, %s" % (v(t0), v(l)))
    e("v_bfe_u32 %s, %s, 4, 1" % (v(t1), v(l)))
    e("v_lshlrev_b32 %s, 2, %s" % (v(t1), v(t1)))
    e("v_and_b32 %s, 7, %s" % (v(t2), v(l)))
    e("v_xor_b32 %s, %s, %s" % (v(t1), v(t1), v(t2)))
    e("v_lshlrev_b32 %s, 4, %s" % (v(t1), v(t1)))
    e("v_lshl_add_u32 %s, %s, 10, %s" % (v(t0), v(t0), v(t1)))
    e("s_lshl_b32 s36, %s, 15" % s(k2_sWv))
    e("v_add_u32 %s, s36, %s" % (v(k2_vWd), v(t0)))
    for n in range(1, 4): e("v_add_u32 %s, %d, %s" % (v(k2_vWd + n), n * 7168, v(k2_vWd)))
    e("s_lshl_b32 %s, %s, 12" % (s(k2_sM), s(k2_sWv)))
    e("s_waitcnt lgkmcnt(0)")
    e("s_cmp_eq_u32 s35, 0")
    e("s_cselect_b64 s[24:25], s[24:25], s[26:27]")
    e("s_lshl_b32 s36, s34, 7")
    e("s_add_u32 %s, s24, s36" % s(k2_sW))
    e("s_addc_u32 %s, s25, 0" % s(k2_sW + 1))
    e("s_sub_u32 %s, %d, s36" % (s(k2_sW + 2), 4096 * 1024))
    e("s_mov_b32 %s, 0x20000" % s(k2_sW + 3))
    e("s_lshl_b32 s36, s35, 3"); e("s_add_u32 s36, s36, s32"); e("s_lshl_b32 s36, s36, 21")
    e("s_lshl_b32 s37, s33, 2"); e("s_add_u32 s37, s37, %s" % s(k2_sWv)); e("s_lshl_b32 s37, s37, 13")
    e("s_add_u32 s36, s36, s37")
    e("s_add_u32 %s, s30, s36" % s(k2_sO))
    e("s_addc_u32 %s, s31, 0" % s(k2_sO + 1))
    e("s_sub_u32 %s, 0x200000, s37" % s(k2_sO + 2))
    e("s_mov_b32 %s, 0x20000" % s(k2_sO + 3))

def k2(e, name):
    o = e.o
    DO = o.get("k2do", 5); DW = o.get("k2dw", 6)
    wpos = [int(c) for c in str(o.get("k2wpos", "0246"))]
    POL["k2o"] = o.get("k2opol", ""); POL["k2w"] = o.get("k2wpol", "")
    e(".text"); e(".globl %s" % name); e(".p2align 8"); e(".type %s,@function" % name); e("%s:" % name)
    e("s_cmp_ge_u32 s2, 256")
    e("s_cbranch_scc1 L2_end")
    stamp_entry(e)
    k2_setup(e)
    l, t0, t1, t2 = k2_vT, k2_vT + 1, k2_vT + 2, k2_vT + 3
    def pro_w(T):
        e("s_add_u32 m0, %s, %d" % (s(k2_sM), (T % K2NS) * 16384))
        e("s_mov_b32 %s, %d" % (s(k2_sWo), T * 131072))
        for n in range(4): e(k2_wdma(n))
    def pro_o(T):
        e("s_mov_b32 %s, %d" % (s(k2_sOo), T * 65536))
        e("s_mov_b32 %s, %d" % (s(k2_sOo2), T * 65536 + 4096))
        for ks in range(8): e(k2_oload(T % K2NS, ks, k2_sOo, k2_sOo2))
    npro = min(DO, DW)
    for T in range(npro): pro_w(T); pro_o(T)
    e("s_mul_i32 s36, s32, 491520")
    e("s_add_u32 %s, s28, s36" % s(k2_sOut))
    e("s_addc_u32 %s, s29, 0" % s(k2_sOut + 1))
    e("s_mov_b32 %s, 491520" % s(k2_sOut + 2))
    e("s_mov_b32 %s, 0x20000" % s(k2_sOut + 3))
    e("v_lshrrev_b32 %s, 5, %s" % (v(t0), v(l)))
    e("v_bfe_u32 %s, %s, 2, 2" % (v(t1), v(l)))
    e("v_lshl_add_u32 %s, %s, 3, %s" % (v(t0), v(t0), v(t1)))
    e("v_lshlrev_b32 %s, 7, %s" % (v(t0), v(t0)))
    e("v_and_b32 %s, 2, %s" % (v(t1), v(t1)))
    e("v_lshl_or_b32 %s, %s, 5, %s" % (v(t0), v(t1), v(t0)))
    e("v_bfe_u32 %s, %s, 4, 1" % (v(t1), v(l)))
    e("v_lshlrev_b32 %s, 5, %s" % (v(t1), v(t1)))
    e("v_add_u32 %s, %s, %s" % (v(t0), v(t0), v(t1)))
    e("v_and_b32 %s, 1, %s" % (v(t1), v(l)))
    e("v_lshl_or_b32 %s, %s, 4, %s" % (v(t0), v(t1), v(t0)))
    e("v_bfe_u32 %s, %s, 1, 1" % (v(t1), v(l)))
    e("v_lshl_or_b32 %s, %s, 3, %s" % (v(k2_vA), v(t1), v(t0)))
    e("v_xor_b32 %s, 64, %s" % (v(k2_vA + 1), v(k2_vA)))
    e("v_add_u32 %s, 0x10000, %s" % (v(k2_vA + 2), v(k2_vA)))
    e("v_add_u32 %s, 0x10000, %s" % (v(k2_vA + 3), v(k2_vA + 1)))
    e("s_lshl_b32 s36, s33, 2"); e("s_add_u32 s36, s36, %s" % s(k2_sWv)); e("s_lshl_b32 s36, s36, 16")
    e("s_lshl_b32 s37, s35, 10"); e("s_add_u32 s36, s36, s37"); e("s_lshl_b32 s37, s34, 7"); e("s_add_u32 s36, s36, s37")
    e("v_and_b32 %s, 31, %s" % (v(t0), v(l)))
    e("v_lshlrev_b32 %s, 11, %s" % (v(t0), v(t0)))
    e("v_lshrrev_b32 %s, 5, %s" % (v(t1), v(l)))
    e("v_lshl_or_b32 %s, %s, 4, %s" % (v(t0), v(t1), v(t0)))
    e("v_add_u32 %s, s36, %s" % (v(k2_vT + 4), v(t0)))
    for k in range(32): e("v_mov_b32 %s, 0" % v(k2_acc + k))
    e("s_mov_b32 %s, %d" % (s(k2_sCnt), 32 // K2NS))
    e(e.wait("k2pro", vm=True)); e("s_barrier")
    for T in range(npro, DW): pro_w(T)
    for T in range(npro, DO): pro_o(T)
    e("s_mov_b32 %s, %d" % (s(k2_sWo), DW * 131072))
    e("s_mov_b32 %s, %d" % (s(k2_sOo), DO * 65536))
    e("s_mov_b32 %s, %d" % (s(k2_sOo2), DO * 65536 + 4096))
    stamp(e, "k2start")
    e.all(k2_areads(0, 0)); e.all(k2_areads(0, 1))
    e("L2_loop:")
    for slot in range(K2NS):
        oslot = (slot + DO) % K2NS; wslot = (slot + DW) % K2NS
        for ks in range(8):
            pre = [e.wait("k2s%dk%d" % (slot, ks), vm=True, lg=True)]
            if ks == 6: pre.append("s_barrier")
            mf = ["%s %s, %s, %s, %s" % (MF32, v(k2_acc + 16 * nt, 16), v(k2A(ks & 3, nt), 4), a(k2O(slot, ks), 4), v(k2_acc + 16 * nt, 16)) for nt in range(2)]
            nslot, nks = (slot, ks + 2) if ks < 6 else ((slot + 1) % K2NS, ks - 6)
            ar = k2_areads(nslot, nks)
            gaps = [ar[0:2], ar[2:4]]
            gaps[1].append(k2_oload(oslot, ks, k2_sOo, k2_sOo2))
            for n in range(4):
                if wpos[n] == ks:
                    if n == 0 or wpos[n - 1] != ks or True:
                        if n == 0: gaps[0] = ["s_add_u32 m0, %s, %d" % (s(k2_sM), wslot * 16384)] + gaps[0]
                    gaps[0].append(k2_wdma(n))
            if ks == 7:
                gaps[1] += ["s_add_u32 %s, %s, 131072" % (s(k2_sWo), s(k2_sWo)),
                    "s_add_u32 %s, %s, 65536" % (s(k2_sOo), s(k2_sOo)), "s_add_u32 %s, %s, 65536" % (s(k2_sOo2), s(k2_sOo2))]
            e.phase = "k2"
            e.all(pre); weave(e, mf, gaps)
    e("s_sub_u32 %s, %s, 1" % (s(k2_sCnt), s(k2_sCnt)))
    e("s_cmp_lg_u32 %s, 0" % s(k2_sCnt))
    e("s_cbranch_scc1 L2_loop")
    stamp(e, "k2loop")
    e("s_waitcnt vmcnt(32) lgkmcnt(0)")
    e("s_nop 15")
    T = k2_A
    for nt in range(2):
        for j in range(8): e("v_cvt_pk_bf16_f32 %s, %s, %s" % (v(T + 8 * nt + j), v(k2_acc + 16 * nt + 2 * j), v(k2_acc + 16 * nt + 2 * j + 1)))
    for nt in range(2):
        for u in range(2): e("buffer_store_dwordx4 %s, %s, %s, 0 offen offset:%d" % (v(T + 8 * nt + 4 * u, 4), v(k2_vT + 4), s(k2_sOut, 4), nt * 64 + u * 32))
    stamp_write(e, 30, STAMP_OFF + (0x100000 if e.o.get("only") != "k2" else 0))
    e("L2_end:")
    e("s_endpgm")

def gen_full(solved, opts):
    e = Em(solved, opts)
    e(HDR.rstrip())
    e("; @launch kernel=%s_kernel grid=(256,1,1) block=(256,1,1) lds=163840" % NAME)
    e("; @launch kernel=oproj_kernel grid=(256,1,1) block=(256,1,1) lds=%d" % K2LDS)
    e('.amdgcn_target "amdgcn-amd-amdhsa--gfx950"')
    k1(e, NAME + "_kernel")
    k2(e, "oproj_kernel")
    desc(e, NAME + "_kernel", 512, 256)
    desc(e, "oproj_kernel", 512, 256)
    return e.text()
def gen_k2_only(solved, opts):
    e = Em(solved, opts)
    e(HDR.rstrip())
    e("; @launch grid=(256,1,1) block=(256,1,1) lds=%d" % K2LDS)
    e('.amdgcn_target "amdgcn-amd-amdhsa--gfx950"')
    k2(e, NAME + "_kernel")
    desc(e, NAME + "_kernel", 512, 256)
    return e.text()
```

```python
import sys, json
sys.path.insert(0, "tools")
import numpy as np, os, importlib
if os.environ.get("GEN"): sys.modules["gen"] = importlib.import_module(os.environ["GEN"])
import gen, t_k1, t_k2
from run_emu import *
out = sys.argv[1]; opts = {}
for kv in sys.argv[2:]:
    k, v_ = kv.split("="); opts[k] = int(v_) if v_.lstrip("-").isdigit() else v_
only = opts.get("only")
o2 = dict(opts); o2.pop("ablate", None)
world = World()
sol = {}
K = gen.NAME + "_kernel"
stamps = []
if only != "k2":
    s1, _ = t_k1.solve_k1(o2, world=world); sol.update(s1)
    txt = gen.gen_k1_only(sol, o2)
    g = run_wg(world, txt, 5, K); assert not g.errors
    stamps = g.stamps
    br, b, hp = k1_decode(5)
    for h in (2 * hp, 2 * hp + 1):
        ref = world.ref_head(br, b, h); got = world.o_from_ws(br, b, h)[:240]
        err = np.abs(got - ref).max(); print("  head %d: max err %.4e" % (h, err)); assert err < 2e-4
if only != "k1":
    s2, _ = t_k2.solve_k2(o2, world=world); sol.update(s2)
    txt = gen.gen_k2_only(sol, o2)
    br, b, qh, nt8 = t_k2.k2_decode(77)
    o = t_k2.fill_o(world, br, b, seed=3); world.out[:] = 0x7FC0
    g = run_wg(world, txt, 77, K, lds=gen.K2LDS); assert not g.errors
    if only == "k2": stamps = g.stamps
    else: stamps2 = g.stamps
    ref = o[:240] @ fb(world.t[br + "wo"]); c0 = (0 if br == "A" else 512) + nt8 * 64; got = fb(world.out[b])
    r0, r1 = qh * 128, min(240, qh * 128 + 128)
    err = np.abs(got[r0:r1, c0:c0 + 64] - ref[r0:r1, nt8 * 64: nt8 * 64 + 64]).max(); print("  k2 max err %.3e" % err); assert err < 1e-5
txt = {"k1": gen.gen_k1_only, "k2": gen.gen_k2_only, None: gen.gen_full}[only](sol, opts)
open(out, "w").write(txt)
if opts.get("stamps"):
    json.dump(stamps, open(out[:-2] + ".stamps.json", "w"))
    if only is None: json.dump(stamps2, open(out[:-2] + ".stamps2.json", "w"))
```

```python
import sys, json, os
NAME = "concat_heads__mha_block_cached__mha_block_cached__near_ridge"

class Em:
    def __init__(self, solved=None, opts=None):
        self.lines = []; self.solved = solved if solved is not None else {}
        self.o = opts or {}
        self.uid = 0
    def __call__(self, s):
        for l in s.split("\n"): self.lines.append(l)
    def all(self, lst):
        for l in lst: self(l)
    def wait(self, name, vm=False, lg=False):
        p = []
        if vm: p.append("vmcnt(%d)" % min(63, self.solved.get(name + ".vm", 63)))
        if lg: p.append("lgkmcnt(%d)" % min(15, self.solved.get(name + ".lg", 15)))
        return "s_waitcnt %s ; auto=%s" % (" ".join(p), name)
    def text(self): return "\n".join(self.lines) + "\n"

def weave(e, mf, gaps):
    assert len(mf) == len(gaps)
    ab = e.o.get("ablate", "")
    ph = getattr(e, "phase", "")
    def keep(x):
        if ph not in ab.split("+") and not any(t.startswith(ph + ":") for t in ab.split("+")): return True
        for t in ab.split("+"):
            if not t.startswith(ph + ":"): continue
            k = t.split(":")[1]
            if k == "dma" and x.startswith("buffer_load") and " lds" in x: return False
            if k == "gld" and x.startswith("buffer_load") and " lds" not in x: return False
            if k == "lds" and x.startswith("ds_read"): return False
            if k == "sm" and (x.startswith("v_exp") or x.startswith("v_add_f32") or x.startswith("v_cvt_pk")): return False
            if k == "xor" and x.startswith("v_xor"): return False
        return True
    nomf = (ph + ":mf") in ab.split("+")
    for m, g in zip(mf, gaps):
        if not nomf: e(m)
        e.all([x for x in g if keep(x)])

def v(n, c=1): return "v%d" % n if c == 1 else "v[%d:%d]" % (n, n + c - 1)
def a(n, c=1): return "a%d" % n if c == 1 else "a[%d:%d]" % (n, n + c - 1)
def s(n, c=1): return "s%d" % n if c == 1 else "s[%d:%d]" % (n, n + c - 1)
MF32 = "v_mfma_f32_32x32x16_bf16"
MF16 = "v_mfma_f32_16x16x32_bf16"

vKA = 2
vVA = 10
vWA = 14
vXA = 18
vKD = 22
vVD = 24
vWD = 25
vXD = 29
vST = 33
vL0, vL1 = 34, 35
vT = 36
vS0, vS1, vP0, vP1, vC0, vC1 = 48, 64, 80, 88, 96, 112
vO = 128
def Ot(t4, t): return vO + (t4 * 2 + t) * 16
aQ, aK, aV, aA1 = 0, 64, 96, 128
def Qf(ks, t): return aQ + (ks * 2 + t) * 4
def Kf(ks): return aK + 4 * ks
def Vf(u, t4): return aV + (u * 4 + t4) * 4
def Wf(st, dt): return 64 + 32 * st + 4 * dt
def Xf(st, kk, t): return 32 * st + (kk * 2 + t) * 4
def A1(t4, t): return aA1 + (t4 * 2 + t) * 16
def Qacc(dt, t): return v(Ot(dt, t), 16) if dt < 4 else a(A1(dt - 4, t), 16)
vWB = 48
vZ0 = 52
vWm, vWmD = 26, 25
vZ = 14
ZB = v(vZ0, 4)
WBUF = [131072, 147456, 49152, 32768]
sX, sW, sK, sV, sO = 4, 8, 12, 16, 20
sWv = 24
sMode = 25
sHead = 26
sKm0, sKm1, sVm0, sVm1 = 27, 28, 29, 30
sWm, sXm = 31, 32
sG, sGp, sD = 33, 34, 35
sKso, sVso = 58, 59
sCnt = 60
sBey = 61
sT0, sT1, sT2, sT3 = 62, 63, 64, 65
sWso, sXso0, sXso1 = 66, 67, 68
sGq, sDq, sKq0, sKq1, sKqso = 69, 70, 71, 72, 73
sBad = 74
sXm2 = 76
sOso = 77
sHp = 78
sVlim = 79
sXe0, sXe1, sXem = 80, 81, 82
sWoo = 83
sWo = 84
LK, LV, LW, LEND = 0, 65536, 131072, 163840
OOB = 0x40000000
CSCALE = 0.12751743

def f2u(x):
    import struct
    return struct.unpack("<I", struct.pack("<f", x))[0]

def zero_mfma(reg, agpr=False):
    return "%s %s, %s, %s, 0" % (MF32, (a if agpr else v)(reg, 16), ZB, ZB)
def set_zb(r):
    global ZB
    ZB = v(r, 4)

POL = {}
def pol(srd):
    p = POL.get(srd, "")
    return (" " + p.replace("_", " ")) if p else ""
def dma(vo, srd, so, off=0, nt=False):
    return "buffer_load_dwordx4 %s, %s, %s offen%s%s lds" % (v(vo), s(srd, 4), s(so) if isinstance(so, int) else so, " offset:%d" % off if off else "", pol(srd))

STAMP_OFF = 0x8000000
def stamp(e, name, lvl=1):
    if e.o.get("stamps", 0) < lvl: return
    e("s_memtime s[98:99]")
    e("s_waitcnt lgkmcnt(0)")
    e("s_mov_b32 m0, s97")
    e("v_writelane_b32 v1, s98, m0 ; stamp=%s" % name)
    e("s_add_u32 s97, s97, 1")
def stamp_entry(e):
    if not e.o.get("stamps"): return
    e("s_memtime s[98:99]")
    e("s_memrealtime s[100:101]")
    e("s_waitcnt lgkmcnt(0)")
    e("s_mov_b32 s97, 2")
    e("v_mov_b32 v1, 0")
    e("s_mov_b32 s96, s100")
    e("v_writelane_b32 v1, s98, 0")
def stamp_write(e, wsreg, off=STAMP_OFF):
    if not e.o.get("stamps"): return
    stamp(e, "end")
    e("s_memrealtime s[100:101]")
    e("s_waitcnt lgkmcnt(0)")
    e("s_sub_u32 s100, s100, s96")
    e("v_writelane_b32 v1, s100, 1")
    e("v_writelane_b32 v1, s96, 63")
    e("v_lshlrev_b32 v2, 2, v0")
    e("s_lshl_b32 s3, s2, 10")
    e("s_add_u32 s3, s3, 0x%x" % off)
    e("v_add_u32 v2, s3, v2")
    e("global_store_dword v2, v1, %s" % s(wsreg, 2))
    e("s_waitcnt vmcnt(0)")

def k1_init(e):
    o = e.o
    e("s_cmp_ge_u32 s2, 256")
    e("s_cbranch_scc1 L1_end")
    stamp_entry(e)
    e("s_mov_b32 %s, 0" % s(sMode))
    e("L1_again:")
    e("s_load_dwordx16 s[36:51], s[0:1], 0")
    e("s_load_dwordx4 s[52:55], s[0:1], 64")
    e("s_load_dwordx2 s[56:57], s[0:1], 96")
    l, g, i, t0, t1, t2 = vT, vT + 1, vT + 2, vT + 3, vT + 4, vT + 5
    e("v_and_b32 %s, 63, v0" % v(l))
    e("v_lshrrev_b32 %s, 6, v0" % v(t0))
    e("v_lshrrev_b32 %s, 4, %s" % (v(g), v(l)))
    e("v_readfirstlane_b32 %s, %s" % (s(sWv), v(t0)))
    e("v_and_b32 %s, 15, %s" % (v(i), v(l)))
    e("s_lshr_b32 s3, s2, 3")
    e("s_and_b32 %s, s3, 3" % s(sT0))
    e("s_and_b32 %s, s2, 1" % s(sT1))
    e("s_lshl_b32 %s, %s, 2" % (s(sT1), s(sT1)))
    e("s_add_u32 %s, %s, %s" % (s(sT0), s(sT0), s(sT1)))
    e("s_lshr_b32 %s, s3, 2" % s(sT1))
    e("s_and_b32 %s, s2, 2" % s(sT2))
    e("s_lshl_b32 %s, %s, 2" % (s(sT2), s(sT2)))
    e("s_add_u32 %s, %s, %s" % (s(sHp), s(sT1), s(sT2)))
    e("s_lshl_b32 %s, %s, 11" % (s(sKm0), s(sWv)))
    e("s_add_u32 %s, %s, 8192" % (s(sKm1), s(sKm0)))
    e("s_add_u32 %s, %s, %d" % (s(sVm1), s(sKm0), LV))
    e("s_add_u32 %s, %s, 8192" % (s(sVm0), s(sVm1)))
    e("s_lshl_b32 %s, %s, 12" % (s(sWm), s(sWv)))
    e("s_lshl_b32 %s, %s, 13" % (s(sXm), s(sWv)))
    e("s_add_u32 %s, %s, %d" % (s(sXm), s(sXm), LV))
    e("s_mov_b32 %s, %d" % (s(sBey), LEND))
    e("v_lshlrev_b32 %s, 2, %s" % (v(t0), v(g)))
    e("v_xor_b32 %s, %s, %s" % (v(t0), v(i), v(t0)))
    e("v_lshlrev_b32 %s, 4, %s" % (v(t0), v(t0)))
    e("s_and_b32 %s, %s, 1" % (s(sT1), s(sWv)))
    e("s_lshl_b32 %s, %s, 17" % (s(sT1), s(sT1)))
    e("s_lshr_b32 %s, %s, 1" % (s(sT2), s(sWv)))
    e("s_lshl_b32 %s, %s, 8" % (s(sT2), s(sT2)))
    e("s_add_u32 %s, %s, %s" % (s(sT1), s(sT1), s(sT2)))
    e("v_lshl_add_u32 %s, %s, 13, %s" % (v(t1), v(g), v(t0)))
    e("v_add_u32 %s, %s, %s" % (v(vWD), s(sT1), v(t1)))
    for n in range(1, 4): e("v_add_u32 %s, %d, %s" % (v(vWD + n), n * (32768 - 1024), v(vWD)))
    e("v_lshl_add_u32 %s, %s, 8, %s" % (v(t1), v(g), v(t0)))
    e("v_add_u32 %s, %s, %s" % (v(vVD), s(sKm0), v(t1)))
    e("v_and_b32 %s, 7, %s" % (v(t0), v(l)))
    e("v_xor_b32 %s, %s, %s" % (v(t0), v(t0), v(g)))
    e("v_lshlrev_b32 %s, 4, %s" % (v(t0), v(t0)))
    e("v_lshrrev_b32 %s, 3, %s" % (v(t1), v(l)))
    e("v_lshl_add_u32 %s, %s, 10, %s" % (v(t1), v(t1), v(t0)))
    e("s_lshl_b32 %s, %s, 16" % (s(sT1), s(sWv)))
    e("v_add_u32 %s, %s, %s" % (v(vXD), s(sT1), v(t1)))
    e("v_xor_b32 %s, 64, %s" % (v(t2), v(vXD)))
    e("v_add_u32 %s, %d, %s" % (v(vXD + 1), 7168, v(t2)))
    e("v_add_u32 %s, %d, %s" % (v(vXD + 2), 2 * 7168, v(vXD)))
    e("v_add_u32 %s, %d, %s" % (v(vXD + 3), 3 * 7168, v(t2)))
    stamp(e, "prek", 3)
    e("s_waitcnt lgkmcnt(0)")
    stamp(e, "karg", 3)
    e("s_bitcmp1_b32 s2, 2")
    e("s_cselect_b64 s[36:37], s[46:47], s[36:37]")
    e("s_cselect_b64 s[38:39], s[48:49], s[38:39]")
    e("s_cselect_b64 s[40:41], s[50:51], s[40:41]")
    e("s_cselect_b64 s[42:43], s[52:53], s[42:43]")
    e("s_cselect_b32 %s, 8, 0" % s(sT3))
    e("s_lshl_b32 %s, %s, 9" % (s(sT1), s(sHp)))
    e("s_add_u32 %s, s42, %s" % (s(sW), s(sT1)))
    e("s_addc_u32 %s, s43, 0" % s(sW + 1))
    e("s_sub_u32 %s, %d, %s" % (s(sW + 2), 512 * 8192, s(sT1)))
    e("s_mov_b32 %s, 0x20000" % s(sW + 3))
    e("s_mul_i32 %s, %s, 245760" % (s(sT1), s(sT0)))
    e("s_add_u32 %s, s36, %s" % (s(sX), s(sT1)))
    e("s_addc_u32 %s, s37, 0" % s(sX + 1))
    e("s_mov_b32 %s, 245760" % s(sX + 2))
    e("s_mov_b32 %s, 0x20000" % s(sX + 3))
    def w0(n_):
        e("s_add_u32 m0, %s, %d" % (s(sWm), WBUF[n_]))
        e("s_mov_b32 %s, %d" % (s(sWso), n_ * 262144))
        for n in range(4): e(dma(vWD + n, sW, sWso, n * 1024))
    def x0(u):
        for m in range(2):
            e("s_add_u32 m0, %s, %d" % (s(sXm), u * 32768 + m * 4096))
            e("s_mov_b32 %s, %d" % (s(sT1), m * 32768 + u * 128))
            for n in range(4): e(dma(vXD + n, sX, sT1, n * 1024))
    w0(0); x0(0)
    stamp(e, "dma0", 3)
    w0(1); x0(1); w0(2); w0(3)
    stamp(e, "dma1", 3)
    e("s_mov_b32 %s, %d" % (s(sWso), 4 * 262144))
    e("s_lshl_b32 %s, %s, 5" % (s(sT1), s(sT0)))
    e("s_lshl_b32 %s, %s, 1" % (s(sT2), s(sHp)))
    e("s_add_u32 %s, %s, %s" % (s(sT1), s(sT1), s(sT2)))
    e("s_lshl_b32 %s, %s, 17" % (s(sT1), s(sT1)))
    e("s_add_u32 %s, s38, %s" % (s(sK), s(sT1)))
    e("s_addc_u32 %s, s39, 0" % s(sK + 1))
    e("s_mov_b32 %s, 262144" % s(sK + 2))
    e("s_mov_b32 %s, 0x20000" % s(sK + 3))
    e("s_add_u32 %s, s40, %s" % (s(sV), s(sT1)))
    e("s_addc_u32 %s, s41, 0" % s(sV + 1))
    e("s_mov_b32 %s, 262144" % s(sV + 2))
    e("s_mov_b32 %s, 0x20000" % s(sV + 3))
    e("s_add_u32 %s, %s, %s" % (s(sT1), s(sT3), s(sT0)))
    e("s_lshl_b32 %s, %s, 21" % (s(sT1), s(sT1)))
    e("s_add_u32 %s, s56, %s" % (s(sO), s(sT1)))
    e("s_addc_u32 %s, s57, 0" % s(sO + 1))
    e("s_mov_b32 %s, 2097152" % s(sO + 2))
    e("s_mov_b32 %s, 0x20000" % s(sO + 3))
    if o.get("warmo", 4):
        e("s_bitcmp1_b32 s2, 2")
        e("s_cselect_b64 s[44:45], s[54:55], s[44:45]")
        e("s_mov_b32 %s, s44" % s(sWo))
        e("s_mov_b32 %s, s45" % s(sWo + 1))
        e("s_mov_b32 %s, %d" % (s(sWo + 2), 4096 * 1024))
        e("s_mov_b32 %s, 0x20000" % s(sWo + 3))
        e("s_and_b32 %s, s2, 3" % s(sT1))
        e("s_lshl_b32 %s, %s, 5" % (s(sT1), s(sT1)))
        e("s_lshr_b32 %s, s2, 3" % s(sT2))
        e("s_add_u32 %s, %s, %s" % (s(sT1), s(sT1), s(sT2)))
        e("s_lshl_b32 %s, %s, 2" % (s(sT1), s(sT1)))
        e("s_add_u32 %s, %s, %s" % (s(sT1), s(sT1), s(sWv)))
        e("s_lshl_b32 %s, %s, 13" % (s(sWoo), s(sT1)))
    e("s_and_b32 %s, %s, 1" % (s(sT1), s(sWv)))
    e("s_lshl_b32 %s, %s, 3" % (s(sT1), s(sT1)))
    e("v_or_b32 %s, %s, %s" % (v(t0), s(sT1), v(g)))
    e("v_xor_b32 %s, %s, %s" % (v(t0), v(i), v(t0)))
    e("v_lshlrev_b32 %s, 4, %s" % (v(t0), v(t0)))
    e("v_lshl_add_u32 %s, %s, 8, %s" % (v(t0), v(g), v(t0)))
    e("v_add_u32 %s, %s, %s" % (v(vKD), s(sKm0), v(t0)))
    e("v_xor_b32 %s, 64, %s" % (v(vKD + 1), v(vKD)))
    e("v_and_b32 %s, 0x13, %s" % (v(t0), v(l)))
    e("v_and_b32 %s, 4, %s" % (v(t1), v(l)))
    e("v_lshl_or_b32 %s, %s, 1, %s" % (v(t0), v(t1), v(t0)))
    e("v_and_b32 %s, 8, %s" % (v(t1), v(l)))
    e("v_lshrrev_b32 %s, 1, %s" % (v(t1), v(t1)))
    e("v_or_b32 %s, %s, %s" % (v(t0), v(t0), v(t1)))
    e("v_and_b32 %s, 15, %s" % (v(t1), v(t0)))
    e("v_lshrrev_b32 %s, 5, %s" % (v(t2), v(l)))
    e("v_xor_b32 %s, %s, %s" % (v(t1), v(t1), v(t2)))
    e("v_lshlrev_b32 %s, 4, %s" % (v(t1), v(t1)))
    e("v_lshl_or_b32 %s, %s, 8, %s" % (v(vKA), v(t0), v(t1)))
    for ks in range(1, 8): e("v_xor_b32 %s, %d, %s" % (v(vKA + ks), ks << 5, v(vKA)))
    e("v_bfe_u32 %s, %s, 2, 2" % (v(t0), v(l)))
    e("v_lshl_add_u32 %s, %s, 3, %s" % (v(t1), v(t2), v(t0)))
    e("v_lshlrev_b32 %s, 8, %s" % (v(t1), v(t1)))
    e("v_lshl_or_b32 %s, %s, 6, %s" % (v(t1), v(t0), v(t1)))
    e("v_bfe_u32 %s, %s, 4, 1" % (v(t0), v(l)))
    e("v_lshl_or_b32 %s, %s, 5, %s" % (v(t1), v(t0), v(t1)))
    e("v_and_b32 %s, 1, %s" % (v(t0), v(l)))
    e("v_lshl_or_b32 %s, %s, 4, %s" % (v(t1), v(t0), v(t1)))
    e("v_bfe_u32 %s, %s, 1, 1" % (v(t0), v(l)))
    e("v_lshl_or_b32 %s, %s, 3, %s" % (v(t1), v(t0), v(t1)))
    e("v_add_u32 %s, %d, %s" % (v(vVA), LV, v(t1)))
    e("v_add_u32 %s, %d, %s" % (v(vWA), LW, v(t1)))
    e("v_add_u32 %s, %d, %s" % (v(vWB), 32768, v(t1)))
    for t in range(1, 4):
        e("v_xor_b32 %s, %d, %s" % (v(vVA + t), t << 6, v(vVA)))
        e("v_xor_b32 %s, %d, %s" % (v(vWA + t), t << 6, v(vWA)))
        e("v_xor_b32 %s, %d, %s" % (v(vWB + t), t << 6, v(vWB)))
    e("v_bfe_u32 %s, %s, 1, 3" % (v(t0), v(l)))
    e("v_xor_b32 %s, %s, %s" % (v(t0), v(t0), v(t2)))
    e("v_lshlrev_b32 %s, 4, %s" % (v(t0), v(t0)))
    e("v_and_b32 %s, 31, %s" % (v(t1), v(l)))
    e("v_lshl_or_b32 %s, %s, 7, %s" % (v(t0), v(t1), v(t0)))
    e("v_add_u32 %s, %s, %s" % (v(vXA), s(sXm), v(t0)))
    for ks in range(1, 4): e("v_xor_b32 %s, %d, %s" % (v(vXA + ks), ks << 5, v(vXA)))
    e("v_lshlrev_b32 %s, 4, %s" % (v(vST), v(l)))
    set_zb(vZ0)
    for k in range(4): e("v_mov_b32 %s, 0" % v(vZ0 + k))
    e("s_mov_b32 %s, 0" % s(sHead))
    e("s_mov_b64 %s, 0" % s(sBad, 2))
    for t in range(8): e(zero_mfma(vO + 16 * t))
    for t in range(8): e(zero_mfma(aA1 + 16 * t, True))
    e(zero_mfma(vC0)); e(zero_mfma(vC1))
    stamp(e, "preinit", 3)
    e(e.wait("init_x0", vm=True))

def w_reads(buf, ks, st):
    r = []
    for dt in range(8):
        base = (vWA if buf < 2 else vWB) + (dt & 3)
        off = (buf * 16384 if buf < 2 else WBUF[buf] - 32768) + (dt >> 2) * 8192 + ks * 4096
        r.append(["ds_read_b64_tr_b16 %s, %s offset:%d" % (a(Wf(st, dt) + 2 * i2, 2), v(base), off + i2 * 1024) for i2 in range(2)])
    return r

def x_reads(buf, st):
    r = []
    for kk in range(4):
        for t in range(2):
            r.append("ds_read_b128 %s, %s offset:%d" % (a(Xf(st, kk, t), 4), v(vXA + kk), buf * 32768 + t * 4096))
    return r

def x_dmas(buf, mreg=None):
    g = []
    for m in range(2):
        pre = "s_add_u32 m0, %s, %d" % (s(sXm if mreg is None else mreg), buf * 32768 + m * 4096)
        g.append((pre, [dma(vXD + n, sX, sXso0 + m, n * 1024) for n in range(4)]))
    return g

def q_sub(e, sb, kind):
    p = (sb >> 1) & 1
    half = sb & 1
    tag = "q%s" % kind["tag"]
    stamp(e, "u" + kind["tag"], 2)
    for ks in range(2):
        kk = 2 * half + ks
        mf = ["%s %s, %s, %s, %s" % (MF32, Qacc(j >> 1, j & 1), a(Wf(ks, j >> 1), 4), a(Xf(p, kk, j & 1), 4), Qacc(j >> 1, j & 1)) for j in range(16)]
        gaps = [[] for _ in range(16)]
        if ks == 1:
            pre = [e.wait(tag + "k1", vm=True, lg=True), "s_barrier"]
            if "q:bar" in e.o.get("ablate", ""): pre = pre[:1]
        else:
            pre = [e.wait(tag + "k0", lg=True)]
        if ks == 0: wr = w_reads(sb, 1, 1)
        elif kind.get("wnext", True): wr = w_reads((sb + 1) & 3, 0, 0)
        else: wr = None
        if wr:
            flat = [x for pr in wr for x in pr]
            for j, x in enumerate(flat): gaps[WRG[j]].append(x)
        if ks == 0 and kind.get("kpair"):
            gaps[0] += ["s_cmp_eq_u32 %s, 1" % s(sCnt), "s_cselect_b32 %s, %s, %s" % (s(sT0), s(sBey), s(sKm0))]
            gaps[1] += ["s_cselect_b32 %s, %s, %s" % (s(sT1), s(sBey), s(sKm1)), "s_cselect_b32 %s, %d, %s" % (s(sKqso), OOB, s(sKqso))]
            gaps[2] += ["s_add_u32 m0, %s, %s" % (s(sGq), s(sT0))]
            gaps[4] += [dma(vKD, sK, sKqso, 0)]
            gaps[6] += [dma(vKD + 1, sK, sKqso, 1024)]
            gaps[7] += ["s_add_u32 m0, %s, %s" % (s(sGq), s(sT1)), "s_add_u32 %s, %s, 8192" % (s(sT0), s(sKqso))]
            gaps[9] += [dma(vKD, sK, sT0, 0)]
            gaps[11] += [dma(vKD + 1, sK, sT0, 1024)]
            gaps[12] += ["s_add_u32 %s, %s, 16384" % (s(sKqso), s(sKqso)), "s_add_u32 %s, %s, 16384" % (s(sGq), s(sGq))]
        if ks == 1 and kind.get("xread"):
            xr = x_reads(p ^ 1, p ^ 1)
            gaps[7] += [e.wait(tag + "x", vm=True)]
            for j in range(8): gaps[8 + j].append(xr[j])
        if ks == 0 and kind.get("xdma"):
            mreg = None
            if kind["xdma"] == "last":
                mreg = sXm2
                gaps[0] += ["s_cmp_eq_u32 %s, 1" % s(sCnt), "s_cselect_b32 %s, %s, %s" % (s(sXm2), s(sBey), s(sXm))]
                gaps[1] += ["s_cselect_b32 %s, %d, %s" % (s(sXso0), OOB, s(sXso0)), "s_cselect_b32 %s, %d, %s" % (s(sXso1), OOB, s(sXso1))]
            g = x_dmas(p ^ 1, mreg)
            gaps[2] += [g[0][0]]
            gaps[3] += [e.wait(tag + "xw", lg=True)]
            for n in range(4): gaps[3 + n] += [g[0][1][n]]
            gaps[7] += [g[1][0]]
            gaps[8] += ["s_add_u32 %s, %s, 128" % (s(sXso0), s(sXso0))]
            for n in range(4): gaps[9 + n] += [g[1][1][n]]
            gaps[13] += ["s_add_u32 %s, %s, 128" % (s(sXso1), s(sXso1))]
        if ks == 0 and kind.get("vset") is not None:
            vs = kind["vset"]
            if vs == 0:
                gaps[0] += ["s_mul_i32 %s, %s, 6144" % (s(sT0), s(sWv))]
                gaps[1] += ["s_mov_b32 %s, %s" % (s(sT1), s(sXm))]
            else:
                gaps[0] += ["s_xor_b32 %s, %s, 2" % (s(sT0), s(sWv)), "s_lshl_b32 %s, %s, 13" % (s(sT0), s(sT0))]
                gaps[1] += ["s_sub_u32 %s, %s, %s" % (s(sT0), s(sT0), s(sKm0)), "s_add_u32 %s, %s, 32768" % (s(sT0), s(sT0)), "s_add_u32 %s, %s, 32768" % (s(sT1), s(sXm))]
                gaps[2] += ["s_cmp_eq_u32 %s, 1" % s(sWv), "s_cselect_b32 %s, %d, %s" % (s(sT0), OOB, s(sT0)), "s_cselect_b32 %s, %s, %s" % (s(sT1), s(sBey), s(sT1))]
            gaps[3] += ["s_mov_b32 m0, %s" % s(sT1), "s_add_u32 %s, %s, 4096" % (s(sT2), s(sT0))]
            d0 = [dma(vVD, sV, sT0, n * 1024) for n in range(4)]
            d1 = [dma(vVD, sV, sT2, n * 1024) for n in range(4)]
            gaps[4] += [e.wait(tag + "vw", lg=True)]
            for n in range(4): gaps[4 + n] += [d0[n]]
            gaps[8] += ["s_add_u32 m0, %s, 4096" % s(sT1)]
            for n in range(4): gaps[9 + n] += [d1[n]]
        if ks == 1 and kind.get("wdma", True):
            gaps[0] += ["s_add_u32 m0, %s, %d" % (s(sWm), WBUF[sb])]
            for n in range(4): gaps[1 + 2 * n] += [dma(vWD + n, sW, sWso, n * 1024)]
            gaps[8] += ["s_add_u32 %s, %s, 262144" % (s(sWso), s(sWso))]
        if ks == 1 and kind.get("kslot") is not None:
            pr = kind["kslot"]
            gaps[0] += ["s_add_u32 m0, %s, %d" % (s(sKm0), WBUF[pr]), "s_mov_b32 %s, %d" % (s(sT0), pr * 16384)]
            gaps[1] += [dma(vKD, sK, sT0, 0)]
            gaps[3] += [dma(vKD + 1, sK, sT0, 1024)]
            gaps[4] += ["s_add_u32 m0, %s, %d" % (s(sKm1), WBUF[pr]), "s_mov_b32 %s, %d" % (s(sT0), pr * 16384 + 8192)]
            gaps[5] += [dma(vKD, sK, sT0, 0)]
            gaps[7] += [dma(vKD + 1, sK, sT0, 1024)]
        if ks == 0 and kind.get("warmo"):
            gaps[13] += ["v_and_b32 %s, 63, v0" % v(vT)]
            gaps[14] += ["v_lshlrev_b32 %s, 7, %s" % (v(vT), v(vT))]
            gaps[15] += ["buffer_load_dword %s, %s, %s, %s offen%s ; nochk" % (v(vT + 11), v(vT), s(sWo, 4), s(sWoo), pol(sWo))]
        e.all(pre)
        weave(e, mf, gaps)

WRG = [0, 0, 1, 2, 3, 4, 5, 6, 7, 8, 9, 10, 11, 12, 13, 13]

def q_phase(e):
    e.phase = "q"
    stamp(e, "head")
    e("s_barrier")
    for l in x_reads(0, 0): e(l)
    for pr in w_reads(0, 0, 0): e.all(pr)
    e("s_mov_b32 %s, %d" % (s(sXso0), 2 * 128))
    e("s_mov_b32 %s, %d" % (s(sXso1), 2 * 128 + 32768))
    e("s_mov_b32 %s, 0" % s(sGq))
    e("s_mov_b32 %s, 0" % s(sKqso))
    e("s_mov_b32 %s, 3" % s(sCnt))
    g = x_dmas(0)
    e(g[0][0])
    e(e.wait("qpro_x", lg=True))
    e.all(g[0][1]); e(g[1][0]); e("s_add_u32 %s, %s, 128" % (s(sXso0), s(sXso0))); e.all(g[1][1])
    e("s_add_u32 %s, %s, 128" % (s(sXso1), s(sXso1)))
    e("L1_qloop:")
    q_sub(e, 0, dict(tag="a", kpair=True, xread=True))
    q_sub(e, 1, dict(tag="b", xdma=True))
    q_sub(e, 2, dict(tag="c", xread=True))
    q_sub(e, 3, dict(tag="d", xdma="last"))
    e("s_sub_u32 %s, %s, 1" % (s(sCnt), s(sCnt)))
    e("s_cmp_lg_u32 %s, 0" % s(sCnt))
    e("s_cbranch_scc1 L1_qloop")
    q_sub(e, 0, dict(tag="12", xread=True, vset=0, wdma=False, warmo=(e.o.get("warmo", 4) == 3)))
    q_sub(e, 1, dict(tag="13", vset=1, wdma=False))
    q_sub(e, 2, dict(tag="14", wdma=False, kslot=2))
    q_sub(e, 3, dict(tag="15", wdma=False, wnext=False, kslot=3))
    set_zb(vZ)
    for k in range(4): e("v_mov_b32 %s, 0" % v(vZ + k))

def q_epilogue(e):
    cs = vT
    e("v_mov_b32 %s, 0x%x" % (v(cs), f2u(CSCALE)))
    e("v_mov_b32 %s, 0x%x" % (v(cs + 1), f2u(CSCALE)))
    e("s_nop 7")
    k = 0
    for t in range(2):
        for dt in range(4):
            base = Ot(dt, t)
            T = vS0 + 8 * (k % 4); k += 1
            for j in range(8): e("v_pk_mul_f32 %s, %s, %s" % (v(base + 2 * j, 2), v(base + 2 * j, 2), v(cs, 2)))
            for j in range(8): e("v_cvt_pk_bf16_f32 %s, %s, %s" % (v(T + j), v(base + 2 * j), v(base + 2 * j + 1)))
            for j in range(8): e("v_accvgpr_write_b32 %s, %s" % (a(Qf(2 * dt + (j >> 2), t) + (j & 3)), v(T + j)))
            e(zero_mfma(base))

def max_prepass(e):
    e("s_cmp_eq_u32 %s, 0" % s(sMode))
    e("s_cbranch_scc1 L1_nomax")
    t0, t1, m0_, m1_ = vT, vT + 1, vT + 2, vT + 3
    e("v_and_b32 %s, 63, v0" % v(t1))
    e("v_and_b32 %s, 0x13, %s" % (v(t0), v(t1)))
    e("v_and_b32 %s, 4, %s" % (v(vT + 4), v(t1)))
    e("v_lshl_or_b32 %s, %s, 1, %s" % (v(t0), v(vT + 4), v(t0)))
    e("v_and_b32 %s, 8, %s" % (v(vT + 4), v(t1)))
    e("v_lshrrev_b32 %s, 1, %s" % (v(vT + 4), v(vT + 4)))
    e("v_or_b32 %s, %s, %s" % (v(t0), v(t0), v(vT + 4)))
    e("v_lshrrev_b32 %s, 5, %s" % (v(t1), v(t1)))
    e("v_lshlrev_b32 %s, 4, %s" % (v(t1), v(t1)))
    e("v_lshl_or_b32 %s, %s, 8, %s" % (v(t0), v(t0), v(t1)))
    e("v_mov_b32 %s, 0xff800000" % v(m0_))
    e("v_mov_b32 %s, 0xff800000" % v(m1_))
    e("s_lshl_b32 %s, %s, 17" % (s(sT0), s(sHead)))
    e("s_mov_b32 %s, 16" % s(sCnt))
    e("L1_maxloop:")
    for ks in range(8): e("buffer_load_dwordx4 %s, %s, %s, %s offen offset:%d" % (a(Kf(ks), 4), v(t0), s(sK, 4), s(sT0), ks * 32))
    e("s_waitcnt vmcnt(0)")
    for t in range(2):
        S = vS0 if t == 0 else vS1
        for ks in range(8): e("%s %s, %s, %s, %s" % (MF32, v(S, 16), a(Kf(ks), 4), a(Qf(ks, t), 4), "0" if ks == 0 else v(S, 16)))
    e("s_nop 15")
    for t in range(2):
        S = vS0 if t == 0 else vS1; m = m0_ if t == 0 else m1_
        for j in range(8): e("v_max3_f32 %s, %s, %s, %s" % (v(m), v(S + 2 * j), v(S + 2 * j + 1), v(m)))
    e("s_add_u32 %s, %s, 8192" % (s(sT0), s(sT0)))
    e("s_sub_u32 %s, %s, 1" % (s(sCnt), s(sCnt)))
    e("s_cmp_lg_u32 %s, 0" % s(sCnt))
    e("s_cbranch_scc1 L1_maxloop")
    for t in range(2):
        m = m0_ if t == 0 else m1_; C = vC0 if t == 0 else vC1
        e("v_mov_b32 %s, %s" % (v(vT + 4), v(m)))
        e("s_nop 1")
        e("v_permlane32_swap_b32 %s, %s" % (v(vT + 4), v(m)))
        e("s_nop 1")
        e("v_max_f32 %s, %s, %s" % (v(m), v(m), v(vT + 4)))
        for j in range(16): e("v_sub_f32 %s, 0, %s" % (v(C + j), v(m)))
    e("L1_nomax:")

def sm_pos(S, P, L, pos):
    r = []
    if pos < 16: r.append("v_exp_f32 %s, %s" % (v(S + pos), v(S + pos)))
    if pos >= 1: r.append("v_add_f32 %s, %s, %s" % (v(L), v(L), v(S + pos - 1)))
    if pos >= 2 and pos % 2 == 0:
        k = pos // 2 - 1
        r.append("v_cvt_pk_bf16_f32 %s, %s, %s" % (v(P + k), v(S + 2 * k), v(S + 2 * k + 1)))
    return r
def smA(pos): return sm_pos(vS0, vP0, vL0, pos)
def smB(pos): return sm_pos(vS1, vP1, vL1, pos)

def pv_mf(t):
    P = vP0 if t == 0 else vP1
    return ["%s %s, %s, %s, %s" % (MF32, v(Ot(j & 3, t), 16), a(Vf(j >> 2, j & 3), 4), v(P + 4 * (j >> 2), 4), v(Ot(j & 3, t), 16)) for j in range(8)]
def qk_mf(t):
    S = vS0 if t == 0 else vS1; C = vC0 if t == 0 else vC1
    return ["%s %s, %s, %s, %s" % (MF32, v(S, 16), a(Kf(ks), 4), a(Qf(ks, t), 4), v(C if ks == 0 else S, 16)) for ks in range(8)]

def att_step(e, par):
    e.phase = "att"
    tag = "s%d" % par
    gaps = [[] for _ in range(8)]
    for j in range(8):
        if j < 2: gaps[j] += smB(14 + j)
        elif j == 2: gaps[j] += smA(0) + smB(16)
        else: gaps[j] += smA(j - 2)
        u, t4 = j >> 2, j & 3
        for i2 in range(2):
            gaps[j].append("ds_read_b64_tr_b16 %s, %s offset:%d" % (a(Vf(u, t4) + 2 * i2, 2), v(vVA + t4), par * 8192 + u * 4096 + i2 * 1024))
    weave(e, pv_mf(1), gaps)
    e(e.wait(tag + "B", vm=True))
    if "att:bar" not in e.o.get("ablate", ""): e("s_barrier")
    gaps = [[] for _ in range(8)]
    for j in range(8):
        gaps[j] += smA(6 + j)
        gaps[j].append("ds_read_b128 %s, %s offset:%d" % (a(Kf(j), 4), v(vKA + j), 8192 if par == 0 else 0))
        if par == 1 and j % 2 == 1: gaps[j].append("v_xor_b32 %s, %s, %s" % (v(vVA + (j >> 1)), s(sD), v(vVA + (j >> 1))))
    weave(e, qk_mf(1), gaps)
    e(e.wait(tag + "G3", lg=True))
    gaps = [[] for _ in range(8)]
    for j in range(8):
        if j < 2: gaps[j] += smA(14 + j)
        elif j == 2: gaps[j] += smB(0) + smA(16)
        else: gaps[j] += smB(j - 2)
    gaps[1] += ["s_add_u32 m0, %s, %s" % (s(sG), s(sKm0 + par))]
    gaps[3] += [dma(vKD, sK, sKso, 0, nt=True)]
    gaps[5] += [dma(vKD + 1, sK, sKso, 1024, nt=True)]
    gaps[6] += ["s_add_u32 %s, %s, 8192" % (s(sKso), s(sKso))]
    gaps[7] += ["s_add_u32 m0, %s, %s" % (s(sGp if par == 0 else sG), s(sVm0 + par))]
    weave(e, pv_mf(0), gaps)
    e(e.wait(tag + "G0", lg=True))
    gaps = [[] for _ in range(8)]
    for j in range(8): gaps[j] += smB(6 + j)
    gaps[1] += [dma(vVD, sV, sVso, 0, nt=True)]
    gaps[3] += [dma(vVD, sV, sVso, 1024, nt=True)]
    gaps[4] += ["s_add_u32 %s, %s, 8192" % (s(sVso), s(sVso))]
    if par == 1 and e.o.get("warmo", 4) == 4:
        gaps[2] += ["buffer_load_dword %s, %s, %s, %s offen%s ; nochk" % (v(vWmD), v(vWm), s(sWo, 4), s(sWoo), pol(sWo))]
        gaps[4] += ["s_add_u32 %s, %s, 512" % (s(sWoo), s(sWoo))]
    if par == 0:
        for j in range(8): gaps[j].append("v_xor_b32 %s, %s, %s" % (v(vKA + j), s(sD), v(vKA + j)))
    else:
        gaps[5] += ["s_mov_b32 %s, %s" % (s(sGp), s(sG)), "s_xor_b32 %s, %s, %s" % (s(sG), s(sG), s(sD))]
        gaps[6] += ["s_xor_b32 %s, %s, 49152" % (s(sD), s(sD))]
        gaps[7] += ["s_sub_u32 %s, %s, 1" % (s(sCnt), s(sCnt)), "s_cmp_lg_u32 %s, 0" % s(sCnt)]
    weave(e, qk_mf(0), gaps)

def attention(e):
    o = e.o
    e(e.wait("apro", vm=True)); e("s_barrier")
    for ks in range(8): e("ds_read_b128 %s, %s" % (a(Kf(ks), 4), v(vKA + ks)))
    e(zero_mfma(aV, True)); e(zero_mfma(aV + 16, True))
    e("v_mov_b32 %s, 0" % v(vL0)); e("v_mov_b32 %s, 0" % v(vL1))
    for k in range(6): e("v_mov_b32 %s, 0" % v(vP1 + k))
    e("v_mov_b32 %s, 0" % v(vS1 + 12)); e("v_mov_b32 %s, 0" % v(vS1 + 13))
    e("v_mov_b32 %s, 0xff800000" % v(vS1 + 14)); e("v_mov_b32 %s, 0xff800000" % v(vS1 + 15))
    e("s_mov_b32 %s, 0" % s(sG))
    e("s_mov_b32 %s, 32768" % s(sGp))
    e("s_mov_b32 %s, 16384" % s(sD))
    e("s_lshl_b32 %s, %s, 17" % (s(sT0), s(sHead)))
    e("s_add_u32 %s, %s, %d" % (s(sKso), s(sT0), 8 * 8192))
    e("s_add_u32 %s, %s, %d" % (s(sVso), s(sT0), 7 * 8192))
    e("s_mov_b32 %s, 8" % s(sCnt))
    wo = o.get("warmo", 4)
    if wo in (1, 2):
        e("v_and_b32 %s, 63, v0" % v(vT))
        e("v_lshlrev_b32 %s, 7, %s" % (v(vT), v(vT)))
        e("s_cmp_eq_u32 %s, %d" % (s(sHead), wo - 1))
        e("s_cselect_b32 %s, %s, %d" % (s(sT2), s(sWoo), OOB))
        e("buffer_load_dword %s, %s, %s, %s offen%s ; nochk" % (v(vT + 11), v(vT), s(sWo, 4), s(sT2), pol(sWo)))
    if wo == 4:
        e("v_and_b32 %s, 63, v0" % v(vT))
        e("v_lshrrev_b32 %s, 2, %s" % (v(vT + 1), v(vT)))
        e("v_lshlrev_b32 %s, 26, %s" % (v(vT + 1), v(vT + 1)))
        e("v_lshl_add_u32 %s, %s, 7, %s" % (v(vWm), v(vT), v(vT + 1)))
    e(e.wait("apro_k", lg=True))
    weave(e, qk_mf(0), [[] for _ in range(8)])
    stamp(e, "Apro")
    e("L1_att:")
    stamp(e, "it", 4)
    att_step(e, 0)
    att_step(e, 1)
    e("s_cbranch_scc1 L1_att")
    gaps = [[] for _ in range(8)]
    for j in range(3): gaps[j] += smB(14 + j)
    gaps[3] += ["s_nop 0"]
    weave(e, pv_mf(1), gaps)

def o_epilogue(e, pack):
    inv = [vT, vT + 2]; tmp = vT + 4; cs = vT + 6; chk = vT + 8
    if pack:
        e("v_mov_b32 %s, 0x%x" % (v(cs), f2u(CSCALE)))
        e("v_mov_b32 %s, 0x%x" % (v(cs + 1), f2u(CSCALE)))
    for t in range(2):
        L = vL0 if t == 0 else vL1
        e("v_mov_b32 %s, %s" % (v(tmp), v(L)))
        e("s_nop 1")
        e("v_permlane32_swap_b32 %s, %s" % (v(tmp), v(L)))
        e("s_nop 1")
        e("v_add_f32 %s, %s, %s" % (v(L), v(L), v(tmp)))
        e("v_cmp_nle_f32 vcc, 0x%x, %s" % (f2u(2.0 ** -16), v(L)))
        e("v_rcp_f32 %s, %s" % (v(inv[t]), v(L)))
        e("s_nop 2")
        e("s_or_b64 %s, %s, vcc" % (s(sBad, 2), s(sBad, 2)))
        e("v_cmp_nge_f32 vcc, 0x%x, %s" % (f2u(2.0 ** 64), v(L)))
        e("v_mov_b32 %s, %s" % (v(inv[t] + 1), v(inv[t])))
        e("s_nop 3")
        e("s_or_b64 %s, %s, vcc" % (s(sBad, 2), s(sBad, 2)))
    e("s_lshl_b32 %s, %s, 14" % (s(sOso), s(sWv)))
    e("s_lshl_b32 %s, %s, 1" % (s(sT0), s(sHp)))
    e("s_add_u32 %s, %s, %s" % (s(sT0), s(sT0), s(sHead)))
    e("s_lshl_b32 %s, %s, 16" % (s(sT0), s(sT0)))
    e("s_add_u32 %s, %s, %s" % (s(sOso), s(sOso), s(sT0)))
    k = 0; first = True
    for t in range(2):
        for t4 in range(4):
            base = Ot(t4, t)
            T = vS0 + 8 * (k % (2 if pack else 6))
            R = vS0 + 16; TQ = vS0 + 32 + 8 * (k % 2)
            k += 1
            if t4 == 0 and t == 1: e("s_add_u32 %s, %s, 8192" % (s(sOso), s(sOso)))
            if t4 % 2 == 0: e("s_add_u32 %s, %s, %d" % (s(sT0), s(sOso), (t4 >> 1) * 4096))
            if pack:
                for j in range(16): e("v_accvgpr_read_b32 %s, %s" % (v(R + j), a(A1(t4, t) + j)))
            for j in range(8): e("v_pk_mul_f32 %s, %s, %s" % (v(base + 2 * j, 2), v(base + 2 * j, 2), v(inv[t], 2)))
            for j in range(8): e("v_cvt_pk_bf16_f32 %s, %s, %s" % (v(T + j), v(base + 2 * j), v(base + 2 * j + 1)))
            e(zero_mfma(base))
            for u in range(2):
                e("buffer_store_dwordx4 %s, %s, %s, %s offen offset:%d%s" % (v(T + 4 * u, 4), v(vST), s(sO, 4), s(sT0), ((t4 & 1) * 2 + u) * 1024, pol(sO)))
            for u in range(2):
                e("%s %s, %s, %s, %s" % (MF16, v(chk, 4), ZB, v(T + 4 * u, 4), "0" if first else v(chk, 4))); first = False
            if pack:
                for j in range(8): e("v_pk_mul_f32 %s, %s, %s" % (v(R + 2 * j, 2), v(R + 2 * j, 2), v(cs, 2)))
                for j in range(8): e("v_cvt_pk_bf16_f32 %s, %s, %s" % (v(TQ + j), v(R + 2 * j), v(R + 2 * j + 1)))
                for j in range(8): e("v_accvgpr_write_b32 %s, %s" % (a(Qf(2 * t4 + (j >> 2), t) + (j & 3)), v(TQ + j)))
    e("s_nop 7")
    e("v_cmp_u_f32 vcc, %s, %s" % (v(chk), v(chk)))
    e("s_nop 3")
    e("s_or_b64 %s, %s, vcc" % (s(sBad, 2), s(sBad, 2)))

def k1_tail(e):
    stamp_write(e, 56)
    if e.o.get("ablate"): e("s_branch L1_end")
    e("s_cmp_lg_u32 %s, 0" % s(sMode))
    e("s_cbranch_scc1 L1_end")
    e("s_waitcnt vmcnt(0) lgkmcnt(0)")
    e("s_barrier")
    e("s_cmp_lg_u64 %s, 0" % s(sBad, 2))
    e("s_cselect_b32 %s, 1, 0" % s(sT0))
    e("v_mov_b32 %s, %s" % (v(vT), s(sT0)))
    e("s_lshl_b32 %s, %s, 2" % (s(sT1), s(sWv)))
    e("v_mov_b32 %s, %s" % (v(vT + 1), s(sT1)))
    e("ds_write_b32 %s, %s" % (v(vT + 1), v(vT)))
    e("s_waitcnt lgkmcnt(0)")
    e("s_barrier")
    e("v_mov_b32 %s, 0" % v(vT + 1))
    e("ds_read_b128 %s, %s" % (v(vT + 4, 4), v(vT + 1)))
    e("s_waitcnt lgkmcnt(0)")
    e("v_or3_b32 %s, %s, %s, %s" % (v(vT), v(vT + 4), v(vT + 5), v(vT + 6)))
    e("v_or_b32 %s, %s, %s" % (v(vT), v(vT), v(vT + 7)))
    e("s_nop 0")
    e("v_readfirstlane_b32 %s, %s" % (s(sT0), v(vT)))
    e("s_nop 3")
    e("s_cmp_eq_u32 %s, 0" % s(sT0))
    e("s_cbranch_scc1 L1_end")
    e("s_mov_b32 %s, 1" % s(sMode))
    e("s_barrier")
    e("s_branch L1_again")
    e("L1_end:")
    e("s_endpgm")

def k1(e, name):
    POL.clear()
    POL.update({sX: e.o.get("xpol", ""), sW: e.o.get("wpol", ""), sK: e.o.get("kvpol", "nt"), sV: e.o.get("kvpol", "nt"), sO: e.o.get("opol", "")})
    e(".text"); e(".globl %s" % name); e(".p2align 8"); e(".type %s,@function" % name); e("%s:" % name)
    k1_init(e)
    q_phase(e)
    stamp(e, "Qend")
    q_epilogue(e)
    e("L1_head:")
    max_prepass(e)
    stamp(e, "Qepi")
    attention(e)
    stamp(e, "Aend")
    e("s_cmp_lg_u32 %s, 0" % s(sHead))
    e("s_cbranch_scc1 L1_last")
    o_epilogue(e, True)
    stamp(e, "Oepi")
    e("s_mov_b32 %s, 1" % s(sHead))
    e("s_branch L1_head")
    e("L1_last:")
    o_epilogue(e, False)
    stamp(e, "Oepi")
    k1_tail(e)

def desc(e, name, vgpr, accum, sgpr=102):
    e('.section .rodata,"a"')
    e(".p2align 6")
    e(".amdhsa_kernel %s" % name)
    e("  .amdhsa_next_free_vgpr %d" % vgpr)
    e("  .amdhsa_next_free_sgpr %d" % sgpr)
    e("  .amdhsa_accum_offset %d" % accum)
    e("  .amdhsa_group_segment_fixed_size 0")
    e("  .amdhsa_kernarg_size 104")
    e("  .amdhsa_user_sgpr_count 2")
    e("  .amdhsa_user_sgpr_kernarg_segment_ptr 1")
    e("  .amdhsa_system_sgpr_workgroup_id_x 1")
    e(".end_amdhsa_kernel")

HDR = """; Kernarg (104 bytes): 0 A_x, 8 A_k_cache, 16 A_v_cache, 24 A_wq, 32 A_wo, 40 B_x, 48 B_k_cache,
"""
def gen_k1_only(solved, opts):
    e = Em(solved, opts)
    e(HDR.rstrip())
    e("; @launch grid=(256,1,1) block=(256,1,1) lds=163840")
    e('.amdgcn_target "amdgcn-amd-amdhsa--gfx950"')
    k1(e, NAME + "_kernel")
    desc(e, NAME + "_kernel", 512, 256)
    return e.text()

k2_vA = 2
k2_vOd = 6
k2_vWd = 7
k2_vT = 12
k2_acc = 32
k2_A = 64
k2_sO, k2_sW, k2_sOut = 4, 8, 12
k2_sWv, k2_sM, k2_sOo, k2_sOo2, k2_sWo, k2_sCnt = 16, 17, 18, 19, 20, 21
K2NS = 8
K2LDS = K2NS * 16384
def k2A(st, nt): return k2_A + (st * 2 + nt) * 4
def k2O(slot, ks): return (slot * 8 + ks) * 4

def k2_areads(slot, ks):
    st = ks & 3
    return ["ds_read_b64_tr_b16 %s, %s offset:%d" % (v(k2A(st, nt) + 2 * i2, 2), v(k2_vA + nt + 2 * (slot >> 2)), (slot & 3) * 16384 + ks * 2048 + i2 * 512) for nt in range(2) for i2 in range(2)]
def k2_oload(slot, ks, so1, so2):
    return "buffer_load_dwordx4 %s, %s, %s, %s offen offset:%d%s" % (a(k2O(slot, ks), 4), v(k2_vOd), s(k2_sO, 4), s(so1 if ks < 4 else so2), (ks & 3) * 1024, pol("k2o"))
def k2_wdma(n):
    return "buffer_load_dwordx4 %s, %s, %s offen offset:%d%s lds" % (v(k2_vWd + n), s(k2_sW, 4), s(k2_sWo), n * 1024, pol("k2w"))

def k2_setup(e):
    e("s_load_dwordx2 s[24:25], s[0:1], 32")
    e("s_load_dwordx2 s[26:27], s[0:1], 72")
    e("s_load_dwordx2 s[28:29], s[0:1], 80")
    e("s_load_dwordx2 s[30:31], s[0:1], 96")
    l, t0, t1, t2 = k2_vT, k2_vT + 1, k2_vT + 2, k2_vT + 3
    e("v_and_b32 %s, 63, v0" % v(l))
    e("v_lshrrev_b32 %s, 6, v0" % v(t0))
    e("v_lshlrev_b32 %s, 4, %s" % (v(k2_vOd), v(l)))
    e("v_readfirstlane_b32 %s, %s" % (s(k2_sWv), v(t0)))
    e("s_lshr_b32 s3, s2, 3")
    e("s_and_b32 s32, s2, 3"); e("s_lshl_b32 s32, s32, 1"); e("s_and_b32 s33, s3, 1"); e("s_add_u32 s32, s32, s33")
    e("s_bfe_u32 s33, s3, 0x10001")
    e("s_lshr_b32 s34, s3, 2")
    e("s_bfe_u32 s35, s2, 0x10002")
    e("v_lshrrev_b32 %s, 3, %s" % (v(t0), v(l)))
    e("v_bfe_u32 %s, %s, 4, 1" % (v(t1), v(l)))
    e("v_lshlrev_b32 %s, 2, %s" % (v(t1), v(t1)))
    e("v_and_b32 %s, 7, %s" % (v(t2), v(l)))
    e("v_xor_b32 %s, %s, %s" % (v(t1), v(t1), v(t2)))
    e("v_lshlrev_b32 %s, 4, %s" % (v(t1), v(t1)))
    e("v_lshl_add_u32 %s, %s, 10, %s" % (v(t0), v(t0), v(t1)))
    e("s_lshl_b32 s36, %s, 15" % s(k2_sWv))
    e("v_add_u32 %s, s36, %s" % (v(k2_vWd), v(t0)))
    for n in range(1, 4): e("v_add_u32 %s, %d, %s" % (v(k2_vWd + n), n * 7168, v(k2_vWd)))
    e("s_lshl_b32 %s, %s, 12" % (s(k2_sM), s(k2_sWv)))
    stamp(e, "prek", 3)
    e("s_waitcnt lgkmcnt(0)")
    stamp(e, "karg", 3)
    e("s_cmp_eq_u32 s35, 0")
    e("s_cselect_b64 s[24:25], s[24:25], s[26:27]")
    e("s_lshl_b32 s36, s34, 7")
    e("s_add_u32 %s, s24, s36" % s(k2_sW))
    e("s_addc_u32 %s, s25, 0" % s(k2_sW + 1))
    e("s_sub_u32 %s, %d, s36" % (s(k2_sW + 2), 4096 * 1024))
    e("s_mov_b32 %s, 0x20000" % s(k2_sW + 3))
    e("s_lshl_b32 s36, s35, 3"); e("s_add_u32 s36, s36, s32"); e("s_lshl_b32 s36, s36, 21")
    e("s_lshl_b32 s37, s33, 2"); e("s_add_u32 s37, s37, %s" % s(k2_sWv)); e("s_lshl_b32 s37, s37, 13")
    e("s_add_u32 s36, s36, s37")
    e("s_add_u32 %s, s30, s36" % s(k2_sO))
    e("s_addc_u32 %s, s31, 0" % s(k2_sO + 1))
    e("s_sub_u32 %s, 0x200000, s37" % s(k2_sO + 2))
    e("s_mov_b32 %s, 0x20000" % s(k2_sO + 3))

def k2(e, name):
    o = e.o
    DO = o.get("k2do", 5); DW = o.get("k2dw", 6)
    wpos = [int(c) for c in str(o.get("k2wpos", "0246"))]
    POL["k2o"] = o.get("k2opol", ""); POL["k2w"] = o.get("k2wpol", "")
    e(".text"); e(".globl %s" % name); e(".p2align 8"); e(".type %s,@function" % name); e("%s:" % name)
    e("s_cmp_ge_u32 s2, 256")
    e("s_cbranch_scc1 L2_end")
    stamp_entry(e)
    k2_setup(e)
    l, t0, t1, t2 = k2_vT, k2_vT + 1, k2_vT + 2, k2_vT + 3
    def pro_w(T):
        e("s_add_u32 m0, %s, %d" % (s(k2_sM), (T % K2NS) * 16384))
        e("s_mov_b32 %s, %d" % (s(k2_sWo), T * 131072))
        for n in range(4): e(k2_wdma(n))
    def pro_o(T):
        e("s_mov_b32 %s, %d" % (s(k2_sOo), T * 65536))
        e("s_mov_b32 %s, %d" % (s(k2_sOo2), T * 65536 + 4096))
        for ks in range(8): e(k2_oload(T % K2NS, ks, k2_sOo, k2_sOo2))
    npro = min(DO, DW)
    for T in range(npro):
        pro_w(T); pro_o(T)
        if T == 0: stamp(e, "dma0", 3)
    stamp(e, "dma1", 3)
    e("s_mul_i32 s36, s32, 491520")
    e("s_add_u32 %s, s28, s36" % s(k2_sOut))
    e("s_addc_u32 %s, s29, 0" % s(k2_sOut + 1))
    e("s_mov_b32 %s, 491520" % s(k2_sOut + 2))
    e("s_mov_b32 %s, 0x20000" % s(k2_sOut + 3))
    e("v_lshrrev_b32 %s, 5, %s" % (v(t0), v(l)))
    e("v_bfe_u32 %s, %s, 2, 2" % (v(t1), v(l)))
    e("v_lshl_add_u32 %s, %s, 3, %s" % (v(t0), v(t0), v(t1)))
    e("v_lshlrev_b32 %s, 7, %s" % (v(t0), v(t0)))
    e("v_and_b32 %s, 2, %s" % (v(t1), v(t1)))
    e("v_lshl_or_b32 %s, %s, 5, %s" % (v(t0), v(t1), v(t0)))
    e("v_bfe_u32 %s, %s, 4, 1" % (v(t1), v(l)))
    e("v_lshlrev_b32 %s, 5, %s" % (v(t1), v(t1)))
    e("v_add_u32 %s, %s, %s" % (v(t0), v(t0), v(t1)))
    e("v_and_b32 %s, 1, %s" % (v(t1), v(l)))
    e("v_lshl_or_b32 %s, %s, 4, %s" % (v(t0), v(t1), v(t0)))
    e("v_bfe_u32 %s, %s, 1, 1" % (v(t1), v(l)))
    e("v_lshl_or_b32 %s, %s, 3, %s" % (v(k2_vA), v(t1), v(t0)))
    e("v_xor_b32 %s, 64, %s" % (v(k2_vA + 1), v(k2_vA)))
    e("v_add_u32 %s, 0x10000, %s" % (v(k2_vA + 2), v(k2_vA)))
    e("v_add_u32 %s, 0x10000, %s" % (v(k2_vA + 3), v(k2_vA + 1)))
    e("s_lshl_b32 s36, s33, 2"); e("s_add_u32 s36, s36, %s" % s(k2_sWv)); e("s_lshl_b32 s36, s36, 16")
    e("s_lshl_b32 s37, s35, 10"); e("s_add_u32 s36, s36, s37"); e("s_lshl_b32 s37, s34, 7"); e("s_add_u32 s36, s36, s37")
    e("v_and_b32 %s, 31, %s" % (v(t0), v(l)))
    e("v_lshlrev_b32 %s, 11, %s" % (v(t0), v(t0)))
    e("v_lshrrev_b32 %s, 5, %s" % (v(t1), v(l)))
    e("v_lshl_or_b32 %s, %s, 4, %s" % (v(t0), v(t1), v(t0)))
    e("v_add_u32 %s, s36, %s" % (v(k2_vT + 4), v(t0)))
    for k in range(32): e("v_mov_b32 %s, 0" % v(k2_acc + k))
    e("s_mov_b32 %s, %d" % (s(k2_sCnt), 32 // K2NS))
    stamp(e, "preinit", 3)
    e(e.wait("k2pro", vm=True)); e("s_barrier")
    for T in range(npro, DW): pro_w(T)
    for T in range(npro, DO): pro_o(T)
    e("s_mov_b32 %s, %d" % (s(k2_sWo), DW * 131072))
    e("s_mov_b32 %s, %d" % (s(k2_sOo), DO * 65536))
    e("s_mov_b32 %s, %d" % (s(k2_sOo2), DO * 65536 + 4096))
    stamp(e, "k2start")
    e.all(k2_areads(0, 0)); e.all(k2_areads(0, 1))
    e("L2_loop:")
    for slot in range(K2NS):
        oslot = (slot + DO) % K2NS; wslot = (slot + DW) % K2NS
        for ks in range(8):
            pre = [e.wait("k2s%dk%d" % (slot, ks), vm=True, lg=True)]
            if ks == 6: pre.append("s_barrier")
            mf = ["%s %s, %s, %s, %s" % (MF32, v(k2_acc + 16 * nt, 16), v(k2A(ks & 3, nt), 4), a(k2O(slot, ks), 4), v(k2_acc + 16 * nt, 16)) for nt in range(2)]
            nslot, nks = (slot, ks + 2) if ks < 6 else ((slot + 1) % K2NS, ks - 6)
            ar = k2_areads(nslot, nks)
            gaps = [ar[0:2], ar[2:4]]
            gaps[1].append(k2_oload(oslot, ks, k2_sOo, k2_sOo2))
            for n in range(4):
                if wpos[n] == ks:
                    if n == 0 or wpos[n - 1] != ks or True:
                        if n == 0: gaps[0] = ["s_add_u32 m0, %s, %d" % (s(k2_sM), wslot * 16384)] + gaps[0]
                    gaps[0].append(k2_wdma(n))
            if ks == 7:
                gaps[1] += ["s_add_u32 %s, %s, 131072" % (s(k2_sWo), s(k2_sWo)),
                    "s_add_u32 %s, %s, 65536" % (s(k2_sOo), s(k2_sOo)), "s_add_u32 %s, %s, 65536" % (s(k2_sOo2), s(k2_sOo2))]
            e.phase = "k2"
            e.all(pre); weave(e, mf, gaps)
    e("s_sub_u32 %s, %s, 1" % (s(k2_sCnt), s(k2_sCnt)))
    e("s_cmp_lg_u32 %s, 0" % s(k2_sCnt))
    e("s_cbranch_scc1 L2_loop")
    stamp(e, "k2loop")
    e("s_waitcnt vmcnt(32) lgkmcnt(0)")
    e("s_nop 15")
    T = k2_A
    for nt in range(2):
        for j in range(8): e("v_cvt_pk_bf16_f32 %s, %s, %s" % (v(T + 8 * nt + j), v(k2_acc + 16 * nt + 2 * j), v(k2_acc + 16 * nt + 2 * j + 1)))
    for nt in range(2):
        for u in range(2): e("buffer_store_dwordx4 %s, %s, %s, 0 offen offset:%d" % (v(T + 8 * nt + 4 * u, 4), v(k2_vT + 4), s(k2_sOut, 4), nt * 64 + u * 32))
    stamp_write(e, 30, STAMP_OFF + (0x100000 if e.o.get("only") != "k2" else 0))
    e("L2_end:")
    e("s_endpgm")

def gen_full(solved, opts):
    e = Em(solved, opts)
    e(HDR.rstrip())
    e("; @launch kernel=%s_kernel grid=(256,1,1) block=(256,1,1) lds=163840" % NAME)
    e("; @launch kernel=oproj_kernel grid=(256,1,1) block=(256,1,1) lds=%d" % K2LDS)
    e('.amdgcn_target "amdgcn-amd-amdhsa--gfx950"')
    k1(e, NAME + "_kernel")
    k2(e, "oproj_kernel")
    desc(e, NAME + "_kernel", 512, 256)
    desc(e, "oproj_kernel", 512, 256)
    return e.text()
def gen_k2_only(solved, opts):
    e = Em(solved, opts)
    e(HDR.rstrip())
    e("; @launch grid=(256,1,1) block=(256,1,1) lds=%d" % K2LDS)
    e('.amdgcn_target "amdgcn-amd-amdhsa--gfx950"')
    k2(e, NAME + "_kernel")
    desc(e, NAME + "_kernel", 512, 256)
    return e.text()
```

```python
import sys, json, os
NAME = "concat_heads__mha_block_cached__mha_block_cached__near_ridge"

class Em:
    def __init__(self, solved=None, opts=None):
        self.lines = []; self.solved = solved if solved is not None else {}
        self.o = opts or {}
        self.uid = 0
    def __call__(self, s):
        for l in s.split("\n"): self.lines.append(l)
    def all(self, lst):
        for l in lst: self(l)
    def wait(self, name, vm=False, lg=False):
        p = []
        if vm: p.append("vmcnt(%d)" % min(63, self.solved.get(name + ".vm", 63)))
        if lg: p.append("lgkmcnt(%d)" % min(15, self.solved.get(name + ".lg", 15)))
        return "s_waitcnt %s ; auto=%s" % (" ".join(p), name)
    def text(self): return "\n".join(self.lines) + "\n"

def weave(e, mf, gaps):
    assert len(mf) == len(gaps)
    ab = e.o.get("ablate", "")
    ph = getattr(e, "phase", "")
    def keep(x):
        if ph not in ab.split("+") and not any(t.startswith(ph + ":") for t in ab.split("+")): return True
        for t in ab.split("+"):
            if not t.startswith(ph + ":"): continue
            k = t.split(":")[1]
            if k == "dma" and x.startswith("buffer_load") and " lds" in x: return False
            if k == "gld" and x.startswith("buffer_load") and " lds" not in x: return False
            if k == "lds" and x.startswith("ds_read"): return False
            if k == "sm" and (x.startswith("v_exp") or x.startswith("v_add_f32") or x.startswith("v_cvt_pk")): return False
            if k == "xor" and x.startswith("v_xor"): return False
        return True
    nomf = (ph + ":mf") in ab.split("+")
    mfirst = ph in str(e.o.get("memfirst", "att")).split("+")
    def ismem(x): return x.startswith("ds_read") or x.startswith("buffer_load")
    for m, g in zip(mf, gaps):
        if not nomf: e(m)
        g = [x for x in g if keep(x)]
        if mfirst:
            g = [x for x in g if ismem(x)] + [x for x in g if not ismem(x)]
        e.all(g)

def v(n, c=1): return "v%d" % n if c == 1 else "v[%d:%d]" % (n, n + c - 1)
def a(n, c=1): return "a%d" % n if c == 1 else "a[%d:%d]" % (n, n + c - 1)
def s(n, c=1): return "s%d" % n if c == 1 else "s[%d:%d]" % (n, n + c - 1)
MF32 = "v_mfma_f32_32x32x16_bf16"
MF16 = "v_mfma_f32_16x16x32_bf16"

vKA = 2
vVA = 10
vWA = 14
vXA = 18
vKD = 22
vVD = 24
vWD = 25
vXD = 29
vST = 33
vL0, vL1 = 34, 35
vT = 36
vS0, vS1, vP0, vP1, vC0, vC1 = 48, 64, 80, 88, 96, 112
vO = 128
def Ot(t4, t): return vO + (t4 * 2 + t) * 16
aQ, aK, aV, aA1 = 0, 64, 96, 128
def Qf(ks, t): return aQ + (ks * 2 + t) * 4
def Kf(ks): return aK + 4 * ks
def Vf(u, t4): return aV + (u * 4 + t4) * 4
def Wf(st, dt): return 64 + 32 * st + 4 * dt
def Xf(st, kk, t): return 32 * st + (kk * 2 + t) * 4
def A1(t4, t): return aA1 + (t4 * 2 + t) * 16
def Qacc(dt, t): return v(Ot(dt, t), 16) if dt < 4 else a(A1(dt - 4, t), 16)
vWB = 48
vZ0 = 52
vWm, vWmD = 26, 25
vZ = 14
ZB = v(vZ0, 4)
WBUF = [131072, 147456, 49152, 32768]
sX, sW, sK, sV, sO = 4, 8, 12, 16, 20
sWv = 24
sMode = 25
sHead = 26
sKm0, sKm1, sVm0, sVm1 = 27, 28, 29, 30
sWm, sXm = 31, 32
sG, sGp, sD = 33, 34, 35
sKso, sVso = 58, 59
sCnt = 60
sBey = 61
sT0, sT1, sT2, sT3 = 62, 63, 64, 65
sWso, sXso0, sXso1 = 66, 67, 68
sGq, sDq, sKq0, sKq1, sKqso = 69, 70, 71, 72, 73
sBad = 74
sXm2 = 76
sOso = 77
sHp = 78
sVlim = 79
sXe0, sXe1, sXem = 80, 81, 82
sWoo = 83
sWo = 84
LK, LV, LW, LEND = 0, 65536, 131072, 163840
OOB = 0x40000000
CSCALE = 0.12751743

def f2u(x):
    import struct
    return struct.unpack("<I", struct.pack("<f", x))[0]

def zero_mfma(reg, agpr=False):
    return "%s %s, %s, %s, 0" % (MF32, (a if agpr else v)(reg, 16), ZB, ZB)
def set_zb(r):
    global ZB
    ZB = v(r, 4)

POL = {}
def pol(srd):
    p = POL.get(srd, "")
    return (" " + p.replace("_", " ")) if p else ""
def dma(vo, srd, so, off=0, nt=False):
    return "buffer_load_dwordx4 %s, %s, %s offen%s%s lds" % (v(vo), s(srd, 4), s(so) if isinstance(so, int) else so, " offset:%d" % off if off else "", pol(srd))

STAMP_OFF = 0x8000000
def stamp(e, name, lvl=1):
    if e.o.get("stamps", 0) < lvl: return
    e("s_memtime s[98:99]")
    e("s_waitcnt lgkmcnt(0)")
    e("s_mov_b32 m0, s97")
    e("v_writelane_b32 v1, s98, m0 ; stamp=%s" % name)
    e("s_add_u32 s97, s97, 1")
def stamp_entry(e):
    if not e.o.get("stamps"): return
    e("s_memtime s[98:99]")
    e("s_memrealtime s[100:101]")
    e("s_waitcnt lgkmcnt(0)")
    e("s_mov_b32 s97, 2")
    e("v_mov_b32 v1, 0")
    e("s_mov_b32 s96, s100")
    e("v_writelane_b32 v1, s98, 0")
def stamp_write(e, wsreg, off=STAMP_OFF):
    if not e.o.get("stamps"): return
    stamp(e, "end")
    e("s_memrealtime s[100:101]")
    e("s_waitcnt lgkmcnt(0)")
    e("s_sub_u32 s100, s100, s96")
    e("v_writelane_b32 v1, s100, 1")
    e("v_writelane_b32 v1, s96, 63")
    e("v_lshlrev_b32 v2, 2, v0")
    e("s_lshl_b32 s3, s2, 10")
    e("s_add_u32 s3, s3, 0x%x" % off)
    e("v_add_u32 v2, s3, v2")
    e("global_store_dword v2, v1, %s" % s(wsreg, 2))
    e("s_waitcnt vmcnt(0)")

def k1_init(e):
    o = e.o
    e("s_cmp_ge_u32 s2, 256")
    e("s_cbranch_scc1 L1_end")
    stamp_entry(e)
    e("s_mov_b32 %s, 0" % s(sMode))
    e("L1_again:")
    e("s_load_dwordx16 s[36:51], s[0:1], 0")
    e("s_load_dwordx4 s[52:55], s[0:1], 64")
    e("s_load_dwordx2 s[56:57], s[0:1], 96")
    l, g, i, t0, t1, t2 = vT, vT + 1, vT + 2, vT + 3, vT + 4, vT + 5
    e("v_and_b32 %s, 63, v0" % v(l))
    e("v_lshrrev_b32 %s, 6, v0" % v(t0))
    e("v_lshrrev_b32 %s, 4, %s" % (v(g), v(l)))
    e("v_readfirstlane_b32 %s, %s" % (s(sWv), v(t0)))
    e("v_and_b32 %s, 15, %s" % (v(i), v(l)))
    e("s_lshr_b32 s3, s2, 3")
    e("s_and_b32 %s, s3, 3" % s(sT0))
    e("s_and_b32 %s, s2, 1" % s(sT1))
    e("s_lshl_b32 %s, %s, 2" % (s(sT1), s(sT1)))
    e("s_add_u32 %s, %s, %s" % (s(sT0), s(sT0), s(sT1)))
    e("s_lshr_b32 %s, s3, 2" % s(sT1))
    e("s_and_b32 %s, s2, 2" % s(sT2))
    e("s_lshl_b32 %s, %s, 2" % (s(sT2), s(sT2)))
    e("s_add_u32 %s, %s, %s" % (s(sHp), s(sT1), s(sT2)))
    e("s_lshl_b32 %s, %s, 11" % (s(sKm0), s(sWv)))
    e("s_add_u32 %s, %s, 8192" % (s(sKm1), s(sKm0)))
    e("s_add_u32 %s, %s, %d" % (s(sVm1), s(sKm0), LV))
    e("s_add_u32 %s, %s, 8192" % (s(sVm0), s(sVm1)))
    e("s_lshl_b32 %s, %s, 12" % (s(sWm), s(sWv)))
    e("s_lshl_b32 %s, %s, 13" % (s(sXm), s(sWv)))
    e("s_add_u32 %s, %s, %d" % (s(sXm), s(sXm), LV))
    e("s_mov_b32 %s, %d" % (s(sBey), LEND))
    e("v_lshlrev_b32 %s, 2, %s" % (v(t0), v(g)))
    e("v_xor_b32 %s, %s, %s" % (v(t0), v(i), v(t0)))
    e("v_lshlrev_b32 %s, 4, %s" % (v(t0), v(t0)))
    e("s_and_b32 %s, %s, 1" % (s(sT1), s(sWv)))
    e("s_lshl_b32 %s, %s, 17" % (s(sT1), s(sT1)))
    e("s_lshr_b32 %s, %s, 1" % (s(sT2), s(sWv)))
    e("s_lshl_b32 %s, %s, 8" % (s(sT2), s(sT2)))
    e("s_add_u32 %s, %s, %s" % (s(sT1), s(sT1), s(sT2)))
    e("v_lshl_add_u32 %s, %s, 13, %s" % (v(t1), v(g), v(t0)))
    e("v_add_u32 %s, %s, %s" % (v(vWD), s(sT1), v(t1)))
    for n in range(1, 4): e("v_add_u32 %s, %d, %s" % (v(vWD + n), n * (32768 - 1024), v(vWD)))
    e("v_lshl_add_u32 %s, %s, 8, %s" % (v(t1), v(g), v(t0)))
    e("v_add_u32 %s, %s, %s" % (v(vVD), s(sKm0), v(t1)))
    e("v_and_b32 %s, 7, %s" % (v(t0), v(l)))
    e("v_xor_b32 %s, %s, %s" % (v(t0), v(t0), v(g)))
    e("v_lshlrev_b32 %s, 4, %s" % (v(t0), v(t0)))
    e("v_lshrrev_b32 %s, 3, %s" % (v(t1), v(l)))
    e("v_lshl_add_u32 %s, %s, 10, %s" % (v(t1), v(t1), v(t0)))
    e("s_lshl_b32 %s, %s, 16" % (s(sT1), s(sWv)))
    e("v_add_u32 %s, %s, %s" % (v(vXD), s(sT1), v(t1)))
    e("v_xor_b32 %s, 64, %s" % (v(t2), v(vXD)))
    e("v_add_u32 %s, %d, %s" % (v(vXD + 1), 7168, v(t2)))
    e("v_add_u32 %s, %d, %s" % (v(vXD + 2), 2 * 7168, v(vXD)))
    e("v_add_u32 %s, %d, %s" % (v(vXD + 3), 3 * 7168, v(t2)))
    stamp(e, "prek", 3)
    e("s_waitcnt lgkmcnt(0)")
    stamp(e, "karg", 3)
    e("s_bitcmp1_b32 s2, 2")
    e("s_cselect_b64 s[36:37], s[46:47], s[36:37]")
    e("s_cselect_b64 s[38:39], s[48:49], s[38:39]")
    e("s_cselect_b64 s[40:41], s[50:51], s[40:41]")
    e("s_cselect_b64 s[42:43], s[52:53], s[42:43]")
    e("s_cselect_b32 %s, 8, 0" % s(sT3))
    e("s_lshl_b32 %s, %s, 9" % (s(sT1), s(sHp)))
    e("s_add_u32 %s, s42, %s" % (s(sW), s(sT1)))
    e("s_addc_u32 %s, s43, 0" % s(sW + 1))
    e("s_sub_u32 %s, %d, %s" % (s(sW + 2), 512 * 8192, s(sT1)))
    e("s_mov_b32 %s, 0x20000" % s(sW + 3))
    e("s_mul_i32 %s, %s, 245760" % (s(sT1), s(sT0)))
    e("s_add_u32 %s, s36, %s" % (s(sX), s(sT1)))
    e("s_addc_u32 %s, s37, 0" % s(sX + 1))
    e("s_mov_b32 %s, 245760" % s(sX + 2))
    e("s_mov_b32 %s, 0x20000" % s(sX + 3))
    def w0(n_):
        e("s_add_u32 m0, %s, %d" % (s(sWm), WBUF[n_]))
        e("s_mov_b32 %s, %d" % (s(sWso), n_ * 262144))
        for n in range(4): e(dma(vWD + n, sW, sWso, n * 1024))
    def x0(u):
        for m in range(2):
            e("s_add_u32 m0, %s, %d" % (s(sXm), u * 32768 + m * 4096))
            e("s_mov_b32 %s, %d" % (s(sT1), m * 32768 + u * 128))
            for n in range(4): e(dma(vXD + n, sX, sT1, n * 1024))
    w0(0); x0(0)
    stamp(e, "dma0", 3)
    w0(1); x0(1); w0(2); w0(3)
    stamp(e, "dma1", 3)
    e("s_mov_b32 %s, %d" % (s(sWso), 4 * 262144))
    e("s_lshl_b32 %s, %s, 5" % (s(sT1), s(sT0)))
    e("s_lshl_b32 %s, %s, 1" % (s(sT2), s(sHp)))
    e("s_add_u32 %s, %s, %s" % (s(sT1), s(sT1), s(sT2)))
    e("s_lshl_b32 %s, %s, 17" % (s(sT1), s(sT1)))
    e("s_add_u32 %s, s38, %s" % (s(sK), s(sT1)))
    e("s_addc_u32 %s, s39, 0" % s(sK + 1))
    e("s_mov_b32 %s, 262144" % s(sK + 2))
    e("s_mov_b32 %s, 0x20000" % s(sK + 3))
    e("s_add_u32 %s, s40, %s" % (s(sV), s(sT1)))
    e("s_addc_u32 %s, s41, 0" % s(sV + 1))
    e("s_mov_b32 %s, 262144" % s(sV + 2))
    e("s_mov_b32 %s, 0x20000" % s(sV + 3))
    e("s_add_u32 %s, %s, %s" % (s(sT1), s(sT3), s(sT0)))
    e("s_lshl_b32 %s, %s, 21" % (s(sT1), s(sT1)))
    e("s_add_u32 %s, s56, %s" % (s(sO), s(sT1)))
    e("s_addc_u32 %s, s57, 0" % s(sO + 1))
    e("s_mov_b32 %s, 2097152" % s(sO + 2))
    e("s_mov_b32 %s, 0x20000" % s(sO + 3))
    if o.get("warmo", 4):
        e("s_bitcmp1_b32 s2, 2")
        e("s_cselect_b64 s[44:45], s[54:55], s[44:45]")
        e("s_mov_b32 %s, s44" % s(sWo))
        e("s_mov_b32 %s, s45" % s(sWo + 1))
        e("s_mov_b32 %s, %d" % (s(sWo + 2), 4096 * 1024))
        e("s_mov_b32 %s, 0x20000" % s(sWo + 3))
        e("s_and_b32 %s, s2, 3" % s(sT1))
        e("s_lshl_b32 %s, %s, 5" % (s(sT1), s(sT1)))
        e("s_lshr_b32 %s, s2, 3" % s(sT2))
        e("s_add_u32 %s, %s, %s" % (s(sT1), s(sT1), s(sT2)))
        e("s_lshl_b32 %s, %s, 2" % (s(sT1), s(sT1)))
        e("s_add_u32 %s, %s, %s" % (s(sT1), s(sT1), s(sWv)))
        e("s_lshl_b32 %s, %s, 13" % (s(sWoo), s(sT1)))
    e("s_and_b32 %s, %s, 1" % (s(sT1), s(sWv)))
    e("s_lshl_b32 %s, %s, 3" % (s(sT1), s(sT1)))
    e("v_or_b32 %s, %s, %s" % (v(t0), s(sT1), v(g)))
    e("v_xor_b32 %s, %s, %s" % (v(t0), v(i), v(t0)))
    e("v_lshlrev_b32 %s, 4, %s" % (v(t0), v(t0)))
    e("v_lshl_add_u32 %s, %s, 8, %s" % (v(t0), v(g), v(t0)))
    e("v_add_u32 %s, %s, %s" % (v(vKD), s(sKm0), v(t0)))
    e("v_xor_b32 %s, 64, %s" % (v(vKD + 1), v(vKD)))
    e("v_and_b32 %s, 0x13, %s" % (v(t0), v(l)))
    e("v_and_b32 %s, 4, %s" % (v(t1), v(l)))
    e("v_lshl_or_b32 %s, %s, 1, %s" % (v(t0), v(t1), v(t0)))
    e("v_and_b32 %s, 8, %s" % (v(t1), v(l)))
    e("v_lshrrev_b32 %s, 1, %s" % (v(t1), v(t1)))
    e("v_or_b32 %s, %s, %s" % (v(t0), v(t0), v(t1)))
    e("v_and_b32 %s, 15, %s" % (v(t1), v(t0)))
    e("v_lshrrev_b32 %s, 5, %s" % (v(t2), v(l)))
    e("v_xor_b32 %s, %s, %s" % (v(t1), v(t1), v(t2)))
    e("v_lshlrev_b32 %s, 4, %s" % (v(t1), v(t1)))
    e("v_lshl_or_b32 %s, %s, 8, %s" % (v(vKA), v(t0), v(t1)))
    for ks in range(1, 8): e("v_xor_b32 %s, %d, %s" % (v(vKA + ks), ks << 5, v(vKA)))
    e("v_bfe_u32 %s, %s, 2, 2" % (v(t0), v(l)))
    e("v_lshl_add_u32 %s, %s, 3, %s" % (v(t1), v(t2), v(t0)))
    e("v_lshlrev_b32 %s, 8, %s" % (v(t1), v(t1)))
    e("v_lshl_or_b32 %s, %s, 6, %s" % (v(t1), v(t0), v(t1)))
    e("v_bfe_u32 %s, %s, 4, 1" % (v(t0), v(l)))
    e("v_lshl_or_b32 %s, %s, 5, %s" % (v(t1), v(t0), v(t1)))
    e("v_and_b32 %s, 1, %s" % (v(t0), v(l)))
    e("v_lshl_or_b32 %s, %s, 4, %s" % (v(t1), v(t0), v(t1)))
    e("v_bfe_u32 %s, %s, 1, 1" % (v(t0), v(l)))
    e("v_lshl_or_b32 %s, %s, 3, %s" % (v(t1), v(t0), v(t1)))
    e("v_add_u32 %s, %d, %s" % (v(vVA), LV, v(t1)))
    e("v_add_u32 %s, %d, %s" % (v(vWA), LW, v(t1)))
    e("v_add_u32 %s, %d, %s" % (v(vWB), 32768, v(t1)))
    for t in range(1, 4):
        e("v_xor_b32 %s, %d, %s" % (v(vVA + t), t << 6, v(vVA)))
        e("v_xor_b32 %s, %d, %s" % (v(vWA + t), t << 6, v(vWA)))
        e("v_xor_b32 %s, %d, %s" % (v(vWB + t), t << 6, v(vWB)))
    e("v_bfe_u32 %s, %s, 1, 3" % (v(t0), v(l)))
    e("v_xor_b32 %s, %s, %s" % (v(t0), v(t0), v(t2)))
    e("v_lshlrev_b32 %s, 4, %s" % (v(t0), v(t0)))
    e("v_and_b32 %s, 31, %s" % (v(t1), v(l)))
    e("v_lshl_or_b32 %s, %s, 7, %s" % (v(t0), v(t1), v(t0)))
    e("v_add_u32 %s, %s, %s" % (v(vXA), s(sXm), v(t0)))
    for ks in range(1, 4): e("v_xor_b32 %s, %d, %s" % (v(vXA + ks), ks << 5, v(vXA)))
    e("v_lshlrev_b32 %s, 4, %s" % (v(vST), v(l)))
    set_zb(vZ0)
    for k in range(4): e("v_mov_b32 %s, 0" % v(vZ0 + k))
    e("s_mov_b32 %s, 0" % s(sHead))
    e("s_mov_b64 %s, 0" % s(sBad, 2))
    for t in range(8): e(zero_mfma(vO + 16 * t))
    for t in range(8): e(zero_mfma(aA1 + 16 * t, True))
    e(zero_mfma(vC0)); e(zero_mfma(vC1))
    stamp(e, "preinit", 3)
    e(e.wait("init_x0", vm=True))

def w_reads(buf, ks, st):
    r = []
    for dt in range(8):
        base = (vWA if buf < 2 else vWB) + (dt & 3)
        off = (buf * 16384 if buf < 2 else WBUF[buf] - 32768) + (dt >> 2) * 8192 + ks * 4096
        r.append(["ds_read_b64_tr_b16 %s, %s offset:%d" % (a(Wf(st, dt) + 2 * i2, 2), v(base), off + i2 * 1024) for i2 in range(2)])
    return r

def x_reads(buf, st):
    r = []
    for kk in range(4):
        for t in range(2):
            r.append("ds_read_b128 %s, %s offset:%d" % (a(Xf(st, kk, t), 4), v(vXA + kk), buf * 32768 + t * 4096))
    return r

def x_dmas(buf, mreg=None):
    g = []
    for m in range(2):
        pre = "s_add_u32 m0, %s, %d" % (s(sXm if mreg is None else mreg), buf * 32768 + m * 4096)
        g.append((pre, [dma(vXD + n, sX, sXso0 + m, n * 1024) for n in range(4)]))
    return g

def q_sub(e, sb, kind):
    p = (sb >> 1) & 1
    half = sb & 1
    tag = "q%s" % kind["tag"]
    stamp(e, "u" + kind["tag"], 2)
    for ks in range(2):
        kk = 2 * half + ks
        mf = ["%s %s, %s, %s, %s" % (MF32, Qacc(j >> 1, j & 1), a(Wf(ks, j >> 1), 4), a(Xf(p, kk, j & 1), 4), Qacc(j >> 1, j & 1)) for j in range(16)]
        gaps = [[] for _ in range(16)]
        if ks == 1:
            pre = [e.wait(tag + "k1", vm=True, lg=True), "s_barrier"]
            if "q:bar" in e.o.get("ablate", ""): pre = pre[:1]
        else:
            pre = [e.wait(tag + "k0", lg=True)]
        if ks == 0: wr = w_reads(sb, 1, 1)
        elif kind.get("wnext", True): wr = w_reads((sb + 1) & 3, 0, 0)
        else: wr = None
        if wr:
            flat = [x for pr in wr for x in pr]
            for j, x in enumerate(flat): gaps[WRG[j]].append(x)
        if ks == 0 and kind.get("kpair"):
            gaps[0] += ["s_cmp_eq_u32 %s, 1" % s(sCnt), "s_cselect_b32 %s, %s, %s" % (s(sT0), s(sBey), s(sKm0))]
            gaps[1] += ["s_cselect_b32 %s, %s, %s" % (s(sT1), s(sBey), s(sKm1)), "s_cselect_b32 %s, %d, %s" % (s(sKqso), OOB, s(sKqso))]
            gaps[2] += ["s_add_u32 m0, %s, %s" % (s(sGq), s(sT0))]
            gaps[4] += [dma(vKD, sK, sKqso, 0)]
            gaps[6] += [dma(vKD + 1, sK, sKqso, 1024)]
            gaps[7] += ["s_add_u32 m0, %s, %s" % (s(sGq), s(sT1)), "s_add_u32 %s, %s, 8192" % (s(sT0), s(sKqso))]
            gaps[9] += [dma(vKD, sK, sT0, 0)]
            gaps[11] += [dma(vKD + 1, sK, sT0, 1024)]
            gaps[12] += ["s_add_u32 %s, %s, 16384" % (s(sKqso), s(sKqso)), "s_add_u32 %s, %s, 16384" % (s(sGq), s(sGq))]
        if ks == 1 and kind.get("xread"):
            xr = x_reads(p ^ 1, p ^ 1)
            gaps[7] += [e.wait(tag + "x", vm=True)]
            for j in range(8): gaps[8 + j].append(xr[j])
        if ks == 0 and kind.get("xdma"):
            mreg = None
            if kind["xdma"] == "last":
                mreg = sXm2
                gaps[0] += ["s_cmp_eq_u32 %s, 1" % s(sCnt), "s_cselect_b32 %s, %s, %s" % (s(sXm2), s(sBey), s(sXm))]
                gaps[1] += ["s_cselect_b32 %s, %d, %s" % (s(sXso0), OOB, s(sXso0)), "s_cselect_b32 %s, %d, %s" % (s(sXso1), OOB, s(sXso1))]
            g = x_dmas(p ^ 1, mreg)
            gaps[2] += [g[0][0]]
            gaps[3] += [e.wait(tag + "xw", lg=True)]
            for n in range(4): gaps[3 + n] += [g[0][1][n]]
            gaps[7] += [g[1][0]]
            gaps[8] += ["s_add_u32 %s, %s, 128" % (s(sXso0), s(sXso0))]
            for n in range(4): gaps[9 + n] += [g[1][1][n]]
            gaps[13] += ["s_add_u32 %s, %s, 128" % (s(sXso1), s(sXso1))]
        if ks == 0 and kind.get("vset") is not None:
            vs = kind["vset"]
            if vs == 0:
                gaps[0] += ["s_mul_i32 %s, %s, 6144" % (s(sT0), s(sWv))]
                gaps[1] += ["s_mov_b32 %s, %s" % (s(sT1), s(sXm))]
            else:
                gaps[0] += ["s_xor_b32 %s, %s, 2" % (s(sT0), s(sWv)), "s_lshl_b32 %s, %s, 13" % (s(sT0), s(sT0))]
                gaps[1] += ["s_sub_u32 %s, %s, %s" % (s(sT0), s(sT0), s(sKm0)), "s_add_u32 %s, %s, 32768" % (s(sT0), s(sT0)), "s_add_u32 %s, %s, 32768" % (s(sT1), s(sXm))]
                gaps[2] += ["s_cmp_eq_u32 %s, 1" % s(sWv), "s_cselect_b32 %s, %d, %s" % (s(sT0), OOB, s(sT0)), "s_cselect_b32 %s, %s, %s" % (s(sT1), s(sBey), s(sT1))]
            gaps[3] += ["s_mov_b32 m0, %s" % s(sT1), "s_add_u32 %s, %s, 4096" % (s(sT2), s(sT0))]
            d0 = [dma(vVD, sV, sT0, n * 1024) for n in range(4)]
            d1 = [dma(vVD, sV, sT2, n * 1024) for n in range(4)]
            gaps[4] += [e.wait(tag + "vw", lg=True)]
            for n in range(4): gaps[4 + n] += [d0[n]]
            gaps[8] += ["s_add_u32 m0, %s, 4096" % s(sT1)]
            for n in range(4): gaps[9 + n] += [d1[n]]
        if ks == 1 and kind.get("wdma", True):
            gaps[0] += ["s_add_u32 m0, %s, %d" % (s(sWm), WBUF[sb])]
            for n in range(4): gaps[1 + 2 * n] += [dma(vWD + n, sW, sWso, n * 1024)]
            gaps[8] += ["s_add_u32 %s, %s, 262144" % (s(sWso), s(sWso))]
        if ks == 1 and kind.get("kslot") is not None:
            pr = kind["kslot"]
            gaps[0] += ["s_add_u32 m0, %s, %d" % (s(sKm0), WBUF[pr]), "s_mov_b32 %s, %d" % (s(sT0), pr * 16384)]
            gaps[1] += [dma(vKD, sK, sT0, 0)]
            gaps[3] += [dma(vKD + 1, sK, sT0, 1024)]
            gaps[4] += ["s_add_u32 m0, %s, %d" % (s(sKm1), WBUF[pr]), "s_mov_b32 %s, %d" % (s(sT0), pr * 16384 + 8192)]
            gaps[5] += [dma(vKD, sK, sT0, 0)]
            gaps[7] += [dma(vKD + 1, sK, sT0, 1024)]
        if ks == 0 and kind.get("warmo"):
            gaps[13] += ["v_and_b32 %s, 63, v0" % v(vT)]
            gaps[14] += ["v_lshlrev_b32 %s, 7, %s" % (v(vT), v(vT))]
            gaps[15] += ["buffer_load_dword %s, %s, %s, %s offen%s ; nochk" % (v(vT + 11), v(vT), s(sWo, 4), s(sWoo), pol(sWo))]
        e.all(pre)
        weave(e, mf, gaps)

WRG = [0, 0, 1, 2, 3, 4, 5, 6, 7, 8, 9, 10, 11, 12, 13, 13]

def q_phase(e):
    e.phase = "q"
    stamp(e, "head")
    e("s_barrier")
    for l in x_reads(0, 0): e(l)
    for pr in w_reads(0, 0, 0): e.all(pr)
    e("s_mov_b32 %s, %d" % (s(sXso0), 2 * 128))
    e("s_mov_b32 %s, %d" % (s(sXso1), 2 * 128 + 32768))
    e("s_mov_b32 %s, 0" % s(sGq))
    e("s_mov_b32 %s, 0" % s(sKqso))
    e("s_mov_b32 %s, 3" % s(sCnt))
    g = x_dmas(0)
    e(g[0][0])
    e(e.wait("qpro_x", lg=True))
    e.all(g[0][1]); e(g[1][0]); e("s_add_u32 %s, %s, 128" % (s(sXso0), s(sXso0))); e.all(g[1][1])
    e("s_add_u32 %s, %s, 128" % (s(sXso1), s(sXso1)))
    e("L1_qloop:")
    q_sub(e, 0, dict(tag="a", kpair=True, xread=True))
    q_sub(e, 1, dict(tag="b", xdma=True))
    q_sub(e, 2, dict(tag="c", xread=True))
    q_sub(e, 3, dict(tag="d", xdma="last"))
    e("s_sub_u32 %s, %s, 1" % (s(sCnt), s(sCnt)))
    e("s_cmp_lg_u32 %s, 0" % s(sCnt))
    e("s_cbranch_scc1 L1_qloop")
    q_sub(e, 0, dict(tag="12", xread=True, vset=0, wdma=False, warmo=(e.o.get("warmo", 4) == 3)))
    q_sub(e, 1, dict(tag="13", vset=1, wdma=False))
    q_sub(e, 2, dict(tag="14", wdma=False, kslot=2))
    q_sub(e, 3, dict(tag="15", wdma=False, wnext=False, kslot=3))
    set_zb(vZ)
    for k in range(4): e("v_mov_b32 %s, 0" % v(vZ + k))

def q_epilogue(e):
    cs = vT
    e("v_mov_b32 %s, 0x%x" % (v(cs), f2u(CSCALE)))
    e("v_mov_b32 %s, 0x%x" % (v(cs + 1), f2u(CSCALE)))
    e("s_nop 7")
    k = 0
    for t in range(2):
        for dt in range(4):
            base = Ot(dt, t)
            T = vS0 + 8 * (k % 4); k += 1
            for j in range(8): e("v_pk_mul_f32 %s, %s, %s" % (v(base + 2 * j, 2), v(base + 2 * j, 2), v(cs, 2)))
            for j in range(8): e("v_cvt_pk_bf16_f32 %s, %s, %s" % (v(T + j), v(base + 2 * j), v(base + 2 * j + 1)))
            for j in range(8): e("v_accvgpr_write_b32 %s, %s" % (a(Qf(2 * dt + (j >> 2), t) + (j & 3)), v(T + j)))
            e(zero_mfma(base))

def max_prepass(e):
    e("s_cmp_eq_u32 %s, 0" % s(sMode))
    e("s_cbranch_scc1 L1_nomax")
    t0, t1, m0_, m1_ = vT, vT + 1, vT + 2, vT + 3
    e("v_and_b32 %s, 63, v0" % v(t1))
    e("v_and_b32 %s, 0x13, %s" % (v(t0), v(t1)))
    e("v_and_b32 %s, 4, %s" % (v(vT + 4), v(t1)))
    e("v_lshl_or_b32 %s, %s, 1, %s" % (v(t0), v(vT + 4), v(t0)))
    e("v_and_b32 %s, 8, %s" % (v(vT + 4), v(t1)))
    e("v_lshrrev_b32 %s, 1, %s" % (v(vT + 4), v(vT + 4)))
    e("v_or_b32 %s, %s, %s" % (v(t0), v(t0), v(vT + 4)))
    e("v_lshrrev_b32 %s, 5, %s" % (v(t1), v(t1)))
    e("v_lshlrev_b32 %s, 4, %s" % (v(t1), v(t1)))
    e("v_lshl_or_b32 %s, %s, 8, %s" % (v(t0), v(t0), v(t1)))
    e("v_mov_b32 %s, 0xff800000" % v(m0_))
    e("v_mov_b32 %s, 0xff800000" % v(m1_))
    e("s_lshl_b32 %s, %s, 17" % (s(sT0), s(sHead)))
    e("s_mov_b32 %s, 16" % s(sCnt))
    e("L1_maxloop:")
    for ks in range(8): e("buffer_load_dwordx4 %s, %s, %s, %s offen offset:%d" % (a(Kf(ks), 4), v(t0), s(sK, 4), s(sT0), ks * 32))
    e("s_waitcnt vmcnt(0)")
    for t in range(2):
        S = vS0 if t == 0 else vS1
        for ks in range(8): e("%s %s, %s, %s, %s" % (MF32, v(S, 16), a(Kf(ks), 4), a(Qf(ks, t), 4), "0" if ks == 0 else v(S, 16)))
    e("s_nop 15")
    for t in range(2):
        S = vS0 if t == 0 else vS1; m = m0_ if t == 0 else m1_
        for j in range(8): e("v_max3_f32 %s, %s, %s, %s" % (v(m), v(S + 2 * j), v(S + 2 * j + 1), v(m)))
    e("s_add_u32 %s, %s, 8192" % (s(sT0), s(sT0)))
    e("s_sub_u32 %s, %s, 1" % (s(sCnt), s(sCnt)))
    e("s_cmp_lg_u32 %s, 0" % s(sCnt))
    e("s_cbranch_scc1 L1_maxloop")
    for t in range(2):
        m = m0_ if t == 0 else m1_; C = vC0 if t == 0 else vC1
        e("v_mov_b32 %s, %s" % (v(vT + 4), v(m)))
        e("s_nop 1")
        e("v_permlane32_swap_b32 %s, %s" % (v(vT + 4), v(m)))
        e("s_nop 1")
        e("v_max_f32 %s, %s, %s" % (v(m), v(m), v(vT + 4)))
        for j in range(16): e("v_sub_f32 %s, 0, %s" % (v(C + j), v(m)))
    e("L1_nomax:")

def sm_pos(S, P, L, pos):
    r = []
    if pos < 16: r.append("v_exp_f32 %s, %s" % (v(S + pos), v(S + pos)))
    if pos >= 1: r.append("v_add_f32 %s, %s, %s" % (v(L), v(L), v(S + pos - 1)))
    if pos >= 2 and pos % 2 == 0:
        k = pos // 2 - 1
        r.append("v_cvt_pk_bf16_f32 %s, %s, %s" % (v(P + k), v(S + 2 * k), v(S + 2 * k + 1)))
    return r
def smA(pos): return sm_pos(vS0, vP0, vL0, pos)
def smB(pos): return sm_pos(vS1, vP1, vL1, pos)

def pv_mf(t):
    P = vP0 if t == 0 else vP1
    return ["%s %s, %s, %s, %s" % (MF32, v(Ot(j & 3, t), 16), a(Vf(j >> 2, j & 3), 4), v(P + 4 * (j >> 2), 4), v(Ot(j & 3, t), 16)) for j in range(8)]
def qk_mf(t):
    S = vS0 if t == 0 else vS1; C = vC0 if t == 0 else vC1
    return ["%s %s, %s, %s, %s" % (MF32, v(S, 16), a(Kf(ks), 4), a(Qf(ks, t), 4), v(C if ks == 0 else S, 16)) for ks in range(8)]

def weave2(e, mf, gaps, mid):
    weave(e, mf[:4], gaps[:4]); e.all(mid); weave(e, mf[4:], gaps[4:])

def att_step1(e, par):
    e.phase = "att"
    tag = "s%d" % par
    o = e.o
    def vread(j, i2):
        u, t4 = j >> 2, j & 3
        return "ds_read_b64_tr_b16 %s, %s offset:%d" % (a(Vf(u, t4) + 2 * i2, 2), v(vVA + t4), par * 8192 + u * 4096 + i2 * 1024)
    gaps = [[] for _ in range(8)]
    for j in range(8):
        if j < 2: gaps[j] += smB(14 + j)
        elif j == 2: gaps[j] += smA(0) + smB(16)
        else: gaps[j] += smA(j - 2)
        gaps[j].append(vread(j, 0))
    weave(e, pv_mf(1), gaps)
    e(e.wait(tag + "B", vm=True))
    if "att:bar" not in e.o.get("ablate", ""): e("s_barrier")
    gaps = [[] for _ in range(8)]
    for j in range(8):
        gaps[j] += smA(6 + j)
        gaps[j].append(vread(j, 1))
    kd = o.get("attk", 0)
    if kd == 1:
        gaps[0] += ["s_add_u32 m0, %s, %s" % (s(sG), s(sKm0 + par))]
        gaps[1] += [dma(vKD, sK, sKso, 0)]
        gaps[3] += [dma(vKD + 1, sK, sKso, 1024)]
        gaps[5] += ["s_add_u32 %s, %s, 8192" % (s(sKso), s(sKso))]
    weave(e, qk_mf(1), gaps)
    e(e.wait(tag + "G3", lg=True))
    gaps = [[] for _ in range(8)]
    for j in range(8):
        if j < 2: gaps[j] += smA(14 + j)
        elif j == 2: gaps[j] += smB(0) + smA(16)
        else: gaps[j] += smB(j - 2)
        gaps[j].append("ds_read_b128 %s, %s offset:%d" % (a(Kf(j), 4), v(vKA + j), 8192 if par == 0 else 0))
    if par == 1:
        for t4 in range(4): gaps[[1, 3, 5, 7][t4]].append("v_xor_b32 %s, %s, %s" % (v(vVA + t4), s(sD), v(vVA + t4)))
    weave2(e, pv_mf(0), gaps, [e.wait(tag + "G3b", lg=True)])
    e(e.wait(tag + "G0", lg=True))
    gaps = [[] for _ in range(8)]
    for j in range(8): gaps[j] += smB(6 + j)
    if kd == 0:
        gaps[0] += ["s_add_u32 m0, %s, %s" % (s(sG), s(sKm0 + par))]
        gaps[1] += [dma(vKD, sK, sKso, 0)]
        gaps[3] += [dma(vKD + 1, sK, sKso, 1024)]
        gaps[4] += ["s_add_u32 m0, %s, %s" % (s(sGp if par == 0 else sG), s(sVm0 + par))]
        gaps[5] += [dma(vVD, sV, sVso, 0)]
        gaps[7] += [dma(vVD, sV, sVso, 1024)]
        gaps[6] += ["s_add_u32 %s, %s, 8192" % (s(sKso), s(sKso))]
        last = ["s_add_u32 %s, %s, 8192" % (s(sVso), s(sVso))]
    else:
        gaps[0] += ["s_add_u32 m0, %s, %s" % (s(sGp if par == 0 else sG), s(sVm0 + par))]
        gaps[1] += [dma(vVD, sV, sVso, 0)]
        gaps[3] += [dma(vVD, sV, sVso, 1024)]
        gaps[5] += ["s_add_u32 %s, %s, 8192" % (s(sVso), s(sVso))]
        last = []
    if par == 1 and o.get("warmo", 4) == 4:
        gaps[2] += ["buffer_load_dword %s, %s, %s, %s offen%s ; nochk" % (v(vWmD), v(vWm), s(sWo, 4), s(sWoo), pol(sWo))]
        gaps[4] += ["s_add_u32 %s, %s, 512" % (s(sWoo), s(sWoo))]
    if par == 0:
        for j in range(8): gaps[j].append("v_xor_b32 %s, %s, %s" % (v(vKA + j), s(sD), v(vKA + j)))
        gaps[7] += last
    else:
        gaps[5] += ["s_mov_b32 %s, %s" % (s(sGp), s(sG))]
        gaps[6] += ["s_xor_b32 %s, %s, %s" % (s(sG), s(sG), s(sD)), "s_xor_b32 %s, %s, 49152" % (s(sD), s(sD))]
        gaps[7] += last + ["s_sub_u32 %s, %s, 1" % (s(sCnt), s(sCnt)), "s_cmp_lg_u32 %s, 0" % s(sCnt)]
    weave2(e, qk_mf(0), gaps, [e.wait(tag + "G0b", lg=True)])

def att_step(e, par):
    if e.o.get("attp", 0) == 1: return att_step1(e, par)
    e.phase = "att"
    tag = "s%d" % par
    gaps = [[] for _ in range(8)]
    for j in range(8):
        if j < 2: gaps[j] += smB(14 + j)
        elif j == 2: gaps[j] += smA(0) + smB(16)
        else: gaps[j] += smA(j - 2)
        u, t4 = j >> 2, j & 3
        for i2 in range(2):
            gaps[j].append("ds_read_b64_tr_b16 %s, %s offset:%d" % (a(Vf(u, t4) + 2 * i2, 2), v(vVA + t4), par * 8192 + u * 4096 + i2 * 1024))
    weave(e, pv_mf(1), gaps)
    e(e.wait(tag + "B", vm=True))
    if "att:bar" not in e.o.get("ablate", ""): e("s_barrier")
    gaps = [[] for _ in range(8)]
    for j in range(8):
        gaps[j] += smA(6 + j)
        gaps[j].append("ds_read_b128 %s, %s offset:%d" % (a(Kf(j), 4), v(vKA + j), 8192 if par == 0 else 0))
        if par == 1 and j % 2 == 1: gaps[j].append("v_xor_b32 %s, %s, %s" % (v(vVA + (j >> 1)), s(sD), v(vVA + (j >> 1))))
    weave(e, qk_mf(1), gaps)
    e(e.wait(tag + "G3", lg=True))
    gaps = [[] for _ in range(8)]
    for j in range(8):
        if j < 2: gaps[j] += smA(14 + j)
        elif j == 2: gaps[j] += smB(0) + smA(16)
        else: gaps[j] += smB(j - 2)
    gaps[1] += ["s_add_u32 m0, %s, %s" % (s(sG), s(sKm0 + par))]
    gaps[3] += [dma(vKD, sK, sKso, 0, nt=True)]
    gaps[5] += [dma(vKD + 1, sK, sKso, 1024, nt=True)]
    gaps[6] += ["s_add_u32 %s, %s, 8192" % (s(sKso), s(sKso))]
    gaps[7] += ["s_add_u32 m0, %s, %s" % (s(sGp if par == 0 else sG), s(sVm0 + par))]
    weave(e, pv_mf(0), gaps)
    e(e.wait(tag + "G0", lg=True))
    gaps = [[] for _ in range(8)]
    for j in range(8): gaps[j] += smB(6 + j)
    gaps[1] += [dma(vVD, sV, sVso, 0, nt=True)]
    gaps[3] += [dma(vVD, sV, sVso, 1024, nt=True)]
    gaps[4] += ["s_add_u32 %s, %s, 8192" % (s(sVso), s(sVso))]
    if par == 1 and e.o.get("warmo", 4) == 4:
        gaps[2] += ["buffer_load_dword %s, %s, %s, %s offen%s ; nochk" % (v(vWmD), v(vWm), s(sWo, 4), s(sWoo), pol(sWo))]
        gaps[4] += ["s_add_u32 %s, %s, 512" % (s(sWoo), s(sWoo))]
    if par == 0:
        for j in range(8): gaps[j].append("v_xor_b32 %s, %s, %s" % (v(vKA + j), s(sD), v(vKA + j)))
    else:
        gaps[5] += ["s_mov_b32 %s, %s" % (s(sGp), s(sG)), "s_xor_b32 %s, %s, %s" % (s(sG), s(sG), s(sD))]
        gaps[6] += ["s_xor_b32 %s, %s, 49152" % (s(sD), s(sD))]
        gaps[7] += ["s_sub_u32 %s, %s, 1" % (s(sCnt), s(sCnt)), "s_cmp_lg_u32 %s, 0" % s(sCnt)]
    weave(e, qk_mf(0), gaps)

def attention(e):
    o = e.o
    e(e.wait("apro", vm=True)); e("s_barrier")
    for ks in range(8): e("ds_read_b128 %s, %s" % (a(Kf(ks), 4), v(vKA + ks)))
    e(zero_mfma(aV, True)); e(zero_mfma(aV + 16, True))
    e("v_mov_b32 %s, 0" % v(vL0)); e("v_mov_b32 %s, 0" % v(vL1))
    for k in range(6): e("v_mov_b32 %s, 0" % v(vP1 + k))
    e("v_mov_b32 %s, 0" % v(vS1 + 12)); e("v_mov_b32 %s, 0" % v(vS1 + 13))
    e("v_mov_b32 %s, 0xff800000" % v(vS1 + 14)); e("v_mov_b32 %s, 0xff800000" % v(vS1 + 15))
    e("s_mov_b32 %s, 0" % s(sG))
    e("s_mov_b32 %s, 32768" % s(sGp))
    e("s_mov_b32 %s, 16384" % s(sD))
    e("s_lshl_b32 %s, %s, 17" % (s(sT0), s(sHead)))
    e("s_add_u32 %s, %s, %d" % (s(sKso), s(sT0), 8 * 8192))
    e("s_add_u32 %s, %s, %d" % (s(sVso), s(sT0), 7 * 8192))
    e("s_mov_b32 %s, 8" % s(sCnt))
    wo = o.get("warmo", 4)
    if wo in (1, 2):
        e("v_and_b32 %s, 63, v0" % v(vT))
        e("v_lshlrev_b32 %s, 7, %s" % (v(vT), v(vT)))
        e("s_cmp_eq_u32 %s, %d" % (s(sHead), wo - 1))
        e("s_cselect_b32 %s, %s, %d" % (s(sT2), s(sWoo), OOB))
        e("buffer_load_dword %s, %s, %s, %s offen%s ; nochk" % (v(vT + 11), v(vT), s(sWo, 4), s(sT2), pol(sWo)))
    if wo == 4:
        e("v_and_b32 %s, 63, v0" % v(vT))
        e("v_lshrrev_b32 %s, 2, %s" % (v(vT + 1), v(vT)))
        e("v_lshlrev_b32 %s, 26, %s" % (v(vT + 1), v(vT + 1)))
        e("v_lshl_add_u32 %s, %s, 7, %s" % (v(vWm), v(vT), v(vT + 1)))
    e(e.wait("apro_k", lg=True))
    weave(e, qk_mf(0), [[] for _ in range(8)])
    stamp(e, "Apro")
    e("L1_att:")
    stamp(e, "it", 4)
    att_step(e, 0)
    att_step(e, 1)
    e("s_cbranch_scc1 L1_att")
    gaps = [[] for _ in range(8)]
    for j in range(3): gaps[j] += smB(14 + j)
    gaps[3] += ["s_nop 0"]
    weave(e, pv_mf(1), gaps)

def o_epilogue(e, pack):
    inv = [vT, vT + 2]; tmp = vT + 4; cs = vT + 6; chk = vT + 8
    if pack:
        e("v_mov_b32 %s, 0x%x" % (v(cs), f2u(CSCALE)))
        e("v_mov_b32 %s, 0x%x" % (v(cs + 1), f2u(CSCALE)))
    for t in range(2):
        L = vL0 if t == 0 else vL1
        e("v_mov_b32 %s, %s" % (v(tmp), v(L)))
        e("s_nop 1")
        e("v_permlane32_swap_b32 %s, %s" % (v(tmp), v(L)))
        e("s_nop 1")
        e("v_add_f32 %s, %s, %s" % (v(L), v(L), v(tmp)))
        e("v_cmp_nle_f32 vcc, 0x%x, %s" % (f2u(2.0 ** -16), v(L)))
        e("v_rcp_f32 %s, %s" % (v(inv[t]), v(L)))
        e("s_nop 2")
        e("s_or_b64 %s, %s, vcc" % (s(sBad, 2), s(sBad, 2)))
        e("v_cmp_nge_f32 vcc, 0x%x, %s" % (f2u(2.0 ** 64), v(L)))
        e("v_mov_b32 %s, %s" % (v(inv[t] + 1), v(inv[t])))
        e("s_nop 3")
        e("s_or_b64 %s, %s, vcc" % (s(sBad, 2), s(sBad, 2)))
    e("s_lshl_b32 %s, %s, 14" % (s(sOso), s(sWv)))
    e("s_lshl_b32 %s, %s, 1" % (s(sT0), s(sHp)))
    e("s_add_u32 %s, %s, %s" % (s(sT0), s(sT0), s(sHead)))
    e("s_lshl_b32 %s, %s, 16" % (s(sT0), s(sT0)))
    e("s_add_u32 %s, %s, %s" % (s(sOso), s(sOso), s(sT0)))
    k = 0; first = True
    for t in range(2):
        for t4 in range(4):
            base = Ot(t4, t)
            T = vS0 + 8 * (k % (2 if pack else 6))
            R = vS0 + 16; TQ = vS0 + 32 + 8 * (k % 2)
            k += 1
            if t4 == 0 and t == 1: e("s_add_u32 %s, %s, 8192" % (s(sOso), s(sOso)))
            if t4 % 2 == 0: e("s_add_u32 %s, %s, %d" % (s(sT0), s(sOso), (t4 >> 1) * 4096))
            if pack:
                for j in range(16): e("v_accvgpr_read_b32 %s, %s" % (v(R + j), a(A1(t4, t) + j)))
            for j in range(8): e("v_pk_mul_f32 %s, %s, %s" % (v(base + 2 * j, 2), v(base + 2 * j, 2), v(inv[t], 2)))
            for j in range(8): e("v_cvt_pk_bf16_f32 %s, %s, %s" % (v(T + j), v(base + 2 * j), v(base + 2 * j + 1)))
            e(zero_mfma(base))
            for u in range(2):
                e("buffer_store_dwordx4 %s, %s, %s, %s offen offset:%d%s" % (v(T + 4 * u, 4), v(vST), s(sO, 4), s(sT0), ((t4 & 1) * 2 + u) * 1024, pol(sO)))
            for u in range(2):
                e("%s %s, %s, %s, %s" % (MF16, v(chk, 4), ZB, v(T + 4 * u, 4), "0" if first else v(chk, 4))); first = False
            if pack:
                for j in range(8): e("v_pk_mul_f32 %s, %s, %s" % (v(R + 2 * j, 2), v(R + 2 * j, 2), v(cs, 2)))
                for j in range(8): e("v_cvt_pk_bf16_f32 %s, %s, %s" % (v(TQ + j), v(R + 2 * j), v(R + 2 * j + 1)))
                for j in range(8): e("v_accvgpr_write_b32 %s, %s" % (a(Qf(2 * t4 + (j >> 2), t) + (j & 3)), v(TQ + j)))
    e("s_nop 7")
    e("v_cmp_u_f32 vcc, %s, %s" % (v(chk), v(chk)))
    e("s_nop 3")
    e("s_or_b64 %s, %s, vcc" % (s(sBad, 2), s(sBad, 2)))

def k1_tail(e):
    stamp_write(e, 56)
    if e.o.get("ablate"): e("s_branch L1_end")
    e("s_cmp_lg_u32 %s, 0" % s(sMode))
    e("s_cbranch_scc1 L1_end")
    e("s_waitcnt vmcnt(0) lgkmcnt(0)")
    e("s_barrier")
    e("s_cmp_lg_u64 %s, 0" % s(sBad, 2))
    e("s_cselect_b32 %s, 1, 0" % s(sT0))
    e("v_mov_b32 %s, %s" % (v(vT), s(sT0)))
    e("s_lshl_b32 %s, %s, 2" % (s(sT1), s(sWv)))
    e("v_mov_b32 %s, %s" % (v(vT + 1), s(sT1)))
    e("ds_write_b32 %s, %s" % (v(vT + 1), v(vT)))
    e("s_waitcnt lgkmcnt(0)")
    e("s_barrier")
    e("v_mov_b32 %s, 0" % v(vT + 1))
    e("ds_read_b128 %s, %s" % (v(vT + 4, 4), v(vT + 1)))
    e("s_waitcnt lgkmcnt(0)")
    e("v_or3_b32 %s, %s, %s, %s" % (v(vT), v(vT + 4), v(vT + 5), v(vT + 6)))
    e("v_or_b32 %s, %s, %s" % (v(vT), v(vT), v(vT + 7)))
    e("s_nop 0")
    e("v_readfirstlane_b32 %s, %s" % (s(sT0), v(vT)))
    e("s_nop 3")
    e("s_cmp_eq_u32 %s, 0" % s(sT0))
    e("s_cbranch_scc1 L1_end")
    e("s_mov_b32 %s, 1" % s(sMode))
    e("s_barrier")
    e("s_branch L1_again")
    e("L1_end:")
    e("s_endpgm")

def k1(e, name):
    POL.clear()
    POL.update({sX: e.o.get("xpol", ""), sW: e.o.get("wpol", ""), sK: e.o.get("kvpol", "nt"), sV: e.o.get("kvpol", "nt"), sO: e.o.get("opol", "")})
    e(".text"); e(".globl %s" % name); e(".p2align 8"); e(".type %s,@function" % name); e("%s:" % name)
    k1_init(e)
    q_phase(e)
    stamp(e, "Qend")
    q_epilogue(e)
    e("L1_head:")
    max_prepass(e)
    stamp(e, "Qepi")
    attention(e)
    stamp(e, "Aend")
    e("s_cmp_lg_u32 %s, 0" % s(sHead))
    e("s_cbranch_scc1 L1_last")
    o_epilogue(e, True)
    stamp(e, "Oepi")
    e("s_mov_b32 %s, 1" % s(sHead))
    e("s_branch L1_head")
    e("L1_last:")
    o_epilogue(e, False)
    stamp(e, "Oepi")
    k1_tail(e)

def desc(e, name, vgpr, accum, sgpr=102):
    e('.section .rodata,"a"')
    e(".p2align 6")
    e(".amdhsa_kernel %s" % name)
    e("  .amdhsa_next_free_vgpr %d" % vgpr)
    e("  .amdhsa_next_free_sgpr %d" % sgpr)
    e("  .amdhsa_accum_offset %d" % accum)
    e("  .amdhsa_group_segment_fixed_size 0")
    e("  .amdhsa_kernarg_size 104")
    e("  .amdhsa_user_sgpr_count 2")
    e("  .amdhsa_user_sgpr_kernarg_segment_ptr 1")
    e("  .amdhsa_system_sgpr_workgroup_id_x 1")
    e(".end_amdhsa_kernel")

HDR = """; Kernarg (104 bytes): 0 A_x, 8 A_k_cache, 16 A_v_cache, 24 A_wq, 32 A_wo, 40 B_x, 48 B_k_cache,
"""
def gen_k1_only(solved, opts):
    e = Em(solved, opts)
    e(HDR.rstrip())
    e("; @launch grid=(256,1,1) block=(256,1,1) lds=163840")
    e('.amdgcn_target "amdgcn-amd-amdhsa--gfx950"')
    k1(e, NAME + "_kernel")
    desc(e, NAME + "_kernel", 512, 256)
    return e.text()

k2_vA = 2
k2_vOd = 6
k2_vWd = 7
k2_vT = 12
k2_acc = 32
k2_A = 64
k2_sO, k2_sW, k2_sOut = 4, 8, 12
k2_sWv, k2_sM, k2_sOo, k2_sOo2, k2_sWo, k2_sCnt = 16, 17, 18, 19, 20, 21
k2_sP, k2_sPo, k2_sPs = 40, 44, 45
k2_vP, k2_vPD = 11, 30
K2NS = 8
K2LDS = K2NS * 16384
def k2A(st, nt): return k2_A + (st * 2 + nt) * 4
def k2O(slot, ks): return (slot * 8 + ks) * 4

def k2_areads(slot, ks):
    st = ks & 3
    return ["ds_read_b64_tr_b16 %s, %s offset:%d" % (v(k2A(st, nt) + 2 * i2, 2), v(k2_vA + nt + 2 * (slot >> 2)), (slot & 3) * 16384 + ks * 2048 + i2 * 512) for nt in range(2) for i2 in range(2)]
def k2_oload(slot, ks, so1, so2):
    return "buffer_load_dwordx4 %s, %s, %s, %s offen offset:%d%s" % (a(k2O(slot, ks), 4), v(k2_vOd), s(k2_sO, 4), s(so1 if ks < 4 else so2), (ks & 3) * 1024, pol("k2o"))
def k2_wdma(n):
    return "buffer_load_dwordx4 %s, %s, %s offen offset:%d%s lds" % (v(k2_vWd + n), s(k2_sW, 4), s(k2_sWo), n * 1024, pol("k2w"))

def k2_setup(e):
    e("s_load_dwordx2 s[24:25], s[0:1], 32")
    e("s_load_dwordx2 s[26:27], s[0:1], 72")
    e("s_load_dwordx2 s[28:29], s[0:1], 80")
    e("s_load_dwordx2 s[30:31], s[0:1], 96")
    l, t0, t1, t2 = k2_vT, k2_vT + 1, k2_vT + 2, k2_vT + 3
    e("v_and_b32 %s, 63, v0" % v(l))
    e("v_lshrrev_b32 %s, 6, v0" % v(t0))
    e("v_lshlrev_b32 %s, 4, %s" % (v(k2_vOd), v(l)))
    e("v_readfirstlane_b32 %s, %s" % (s(k2_sWv), v(t0)))
    e("s_lshr_b32 s3, s2, 3")
    e("s_and_b32 s32, s2, 3"); e("s_lshl_b32 s32, s32, 1"); e("s_and_b32 s33, s3, 1"); e("s_add_u32 s32, s32, s33")
    e("s_bfe_u32 s33, s3, 0x10001")
    e("s_lshr_b32 s34, s3, 2")
    e("s_bfe_u32 s35, s2, 0x10002")
    e("v_lshrrev_b32 %s, 3, %s" % (v(t0), v(l)))
    e("v_bfe_u32 %s, %s, 4, 1" % (v(t1), v(l)))
    e("v_lshlrev_b32 %s, 2, %s" % (v(t1), v(t1)))
    e("v_and_b32 %s, 7, %s" % (v(t2), v(l)))
    e("v_xor_b32 %s, %s, %s" % (v(t1), v(t1), v(t2)))
    e("v_lshlrev_b32 %s, 4, %s" % (v(t1), v(t1)))
    e("v_lshl_add_u32 %s, %s, 10, %s" % (v(t0), v(t0), v(t1)))
    e("s_lshl_b32 s36, %s, 15" % s(k2_sWv))
    e("v_add_u32 %s, s36, %s" % (v(k2_vWd), v(t0)))
    for n in range(1, 4): e("v_add_u32 %s, %d, %s" % (v(k2_vWd + n), n * 7168, v(k2_vWd)))
    e("s_lshl_b32 %s, %s, 12" % (s(k2_sM), s(k2_sWv)))
    stamp(e, "prek", 3)
    e("s_waitcnt lgkmcnt(0)")
    stamp(e, "karg", 3)
    e("s_cmp_eq_u32 s35, 0")
    e("s_cselect_b64 s[24:25], s[24:25], s[26:27]")
    e("s_lshl_b32 s36, s34, 7")
    e("s_add_u32 %s, s24, s36" % s(k2_sW))
    e("s_addc_u32 %s, s25, 0" % s(k2_sW + 1))
    e("s_sub_u32 %s, %d, s36" % (s(k2_sW + 2), 4096 * 1024))
    e("s_mov_b32 %s, 0x20000" % s(k2_sW + 3))
    e("s_lshl_b32 s36, s35, 3"); e("s_add_u32 s36, s36, s32"); e("s_lshl_b32 s36, s36, 21")
    e("s_lshl_b32 s37, s33, 2"); e("s_add_u32 s37, s37, %s" % s(k2_sWv)); e("s_lshl_b32 s37, s37, 13")
    e("s_add_u32 s36, s36, s37")
    e("s_add_u32 %s, s30, s36" % s(k2_sO))
    e("s_addc_u32 %s, s31, 0" % s(k2_sO + 1))
    e("s_sub_u32 %s, 0x200000, s37" % s(k2_sO + 2))
    e("s_mov_b32 %s, 0x20000" % s(k2_sO + 3))

def k2_pf_setup(e):
    l, t0, t1 = k2_vT, k2_vT + 1, k2_vT + 2
    e("s_lshl_b32 s36, s35, 3"); e("s_add_u32 s36, s36, s32"); e("s_lshl_b32 s36, s36, 21")
    e("s_add_u32 s38, s30, s36"); e("s_addc_u32 s39, s31, 0")
    e("s_cmp_lt_u32 %s, 2" % s(k2_sWv))
    e("s_cselect_b32 %s, s38, %s" % (s(k2_sP), s(k2_sW)))
    e("s_cselect_b32 %s, s39, %s" % (s(k2_sP + 1), s(k2_sW + 1)))
    e("s_cselect_b32 %s, 0x200000, %s" % (s(k2_sP + 2), s(k2_sW + 2)))
    e("s_mov_b32 %s, 0x20000" % s(k2_sP + 3))
    e("s_cselect_b32 %s, 16, 17" % s(k2_sPs))
    e("s_cselect_b32 s37, 7, 10")
    e("s_lshl_b32 %s, 1, %s" % (s(k2_sPs), s(k2_sPs)))
    e("s_lshl_b32 s38, s33, 15"); e("s_lshl_b32 s39, s34, 12"); e("s_add_u32 s38, s38, s39")
    e("s_and_b32 s39, s32, 1"); e("s_lshl_b32 s39, s39, 1"); e("s_add_u32 s39, s39, s33"); e("s_lshl_b32 s39, s39, 15")
    e("s_cmp_lt_u32 %s, 2" % s(k2_sWv))
    e("s_cselect_b32 s38, s38, s39")
    e("s_cselect_b32 s39, 11, 14")
    e("s_and_b32 s36, %s, 1" % s(k2_sWv))
    e("s_lshl_b32 s36, s36, s39")
    e("s_add_u32 %s, s38, s36" % s(k2_sPo))
    e("v_lshlrev_b32 %s, s37, %s" % (v(t0), v(l)))
    e("v_lshrrev_b32 %s, 4, %s" % (v(t1), v(l)))
    e("v_lshlrev_b32 %s, 28, %s" % (v(t1), v(t1)))
    e("v_add_u32 %s, %s, %s" % (v(k2_vP), v(t0), v(t1)))
def k2_pf():
    return "buffer_load_dword %s, %s, %s, %s offen ; nochk" % (v(k2_vPD), v(k2_vP), s(k2_sP, 4), s(k2_sPo))

def k2(e, name):
    o = e.o
    PF = o.get("k2p", 0)
    DO = o.get("k2do", 5); DW = o.get("k2dw", 6)
    wpos = [int(c) for c in str(o.get("k2wpos", "0246"))]
    POL["k2o"] = o.get("k2opol", ""); POL["k2w"] = o.get("k2wpol", "")
    e(".text"); e(".globl %s" % name); e(".p2align 8"); e(".type %s,@function" % name); e("%s:" % name)
    e("s_cmp_ge_u32 s2, 256")
    e("s_cbranch_scc1 L2_end")
    stamp_entry(e)
    k2_setup(e)
    l, t0, t1, t2 = k2_vT, k2_vT + 1, k2_vT + 2, k2_vT + 3
    def pro_w(T):
        e("s_add_u32 m0, %s, %d" % (s(k2_sM), (T % K2NS) * 16384))
        e("s_mov_b32 %s, %d" % (s(k2_sWo), T * 131072))
        for n in range(4): e(k2_wdma(n))
    def pro_o(T):
        e("s_mov_b32 %s, %d" % (s(k2_sOo), T * 65536))
        e("s_mov_b32 %s, %d" % (s(k2_sOo2), T * 65536 + 4096))
        for ks in range(8): e(k2_oload(T % K2NS, ks, k2_sOo, k2_sOo2))
    npro = min(DO, DW)
    for T in range(npro):
        pro_w(T); pro_o(T)
        if T == 0: stamp(e, "dma0", 3)
    if PF:
        k2_pf_setup(e)
        e("s_mul_i32 s36, %s, %d" % (s(k2_sPs), npro))
        e("s_add_u32 %s, %s, s36" % (s(k2_sPo), s(k2_sPo)))
        for T in range(npro, PF):
            e(k2_pf()); e("s_add_u32 %s, %s, %s" % (s(k2_sPo), s(k2_sPo), s(k2_sPs)))
    stamp(e, "dma1", 3)
    e("s_mul_i32 s36, s32, 491520")
    e("s_add_u32 %s, s28, s36" % s(k2_sOut))
    e("s_addc_u32 %s, s29, 0" % s(k2_sOut + 1))
    e("s_mov_b32 %s, 491520" % s(k2_sOut + 2))
    e("s_mov_b32 %s, 0x20000" % s(k2_sOut + 3))
    e("v_lshrrev_b32 %s, 5, %s" % (v(t0), v(l)))
    e("v_bfe_u32 %s, %s, 2, 2" % (v(t1), v(l)))
    e("v_lshl_add_u32 %s, %s, 3, %s" % (v(t0), v(t0), v(t1)))
    e("v_lshlrev_b32 %s, 7, %s" % (v(t0), v(t0)))
    e("v_and_b32 %s, 2, %s" % (v(t1), v(t1)))
    e("v_lshl_or_b32 %s, %s, 5, %s" % (v(t0), v(t1), v(t0)))
    e("v_bfe_u32 %s, %s, 4, 1" % (v(t1), v(l)))
    e("v_lshlrev_b32 %s, 5, %s" % (v(t1), v(t1)))
    e("v_add_u32 %s, %s, %s" % (v(t0), v(t0), v(t1)))
    e("v_and_b32 %s, 1, %s" % (v(t1), v(l)))
    e("v_lshl_or_b32 %s, %s, 4, %s" % (v(t0), v(t1), v(t0)))
    e("v_bfe_u32 %s, %s, 1, 1" % (v(t1), v(l)))
    e("v_lshl_or_b32 %s, %s, 3, %s" % (v(k2_vA), v(t1), v(t0)))
    e("v_xor_b32 %s, 64, %s" % (v(k2_vA + 1), v(k2_vA)))
    e("v_add_u32 %s, 0x10000, %s" % (v(k2_vA + 2), v(k2_vA)))
    e("v_add_u32 %s, 0x10000, %s" % (v(k2_vA + 3), v(k2_vA + 1)))
    e("s_lshl_b32 s36, s33, 2"); e("s_add_u32 s36, s36, %s" % s(k2_sWv)); e("s_lshl_b32 s36, s36, 16")
    e("s_lshl_b32 s37, s35, 10"); e("s_add_u32 s36, s36, s37"); e("s_lshl_b32 s37, s34, 7"); e("s_add_u32 s36, s36, s37")
    e("v_and_b32 %s, 31, %s" % (v(t0), v(l)))
    e("v_lshlrev_b32 %s, 11, %s" % (v(t0), v(t0)))
    e("v_lshrrev_b32 %s, 5, %s" % (v(t1), v(l)))
    e("v_lshl_or_b32 %s, %s, 4, %s" % (v(t0), v(t1), v(t0)))
    e("v_add_u32 %s, s36, %s" % (v(k2_vT + 4), v(t0)))
    for k in range(32): e("v_mov_b32 %s, 0" % v(k2_acc + k))
    e("s_mov_b32 %s, %d" % (s(k2_sCnt), 32 // K2NS))
    stamp(e, "preinit", 3)
    e(e.wait("k2pro", vm=True)); e("s_barrier")
    for T in range(npro, DW): pro_w(T)
    for T in range(npro, DO): pro_o(T)
    e("s_mov_b32 %s, %d" % (s(k2_sWo), DW * 131072))
    e("s_mov_b32 %s, %d" % (s(k2_sOo), DO * 65536))
    e("s_mov_b32 %s, %d" % (s(k2_sOo2), DO * 65536 + 4096))
    stamp(e, "k2start")
    e.all(k2_areads(0, 0)); e.all(k2_areads(0, 1))
    e("L2_loop:")
    for slot in range(K2NS):
        oslot = (slot + DO) % K2NS; wslot = (slot + DW) % K2NS
        for ks in range(8):
            pre = [e.wait("k2s%dk%d" % (slot, ks), vm=True, lg=True)]
            if ks == 6: pre.append("s_barrier")
            mf = ["%s %s, %s, %s, %s" % (MF32, v(k2_acc + 16 * nt, 16), v(k2A(ks & 3, nt), 4), a(k2O(slot, ks), 4), v(k2_acc + 16 * nt, 16)) for nt in range(2)]
            nslot, nks = (slot, ks + 2) if ks < 6 else ((slot + 1) % K2NS, ks - 6)
            ar = k2_areads(nslot, nks)
            gaps = [ar[0:2], ar[2:4]]
            gaps[1].append(k2_oload(oslot, ks, k2_sOo, k2_sOo2))
            for n in range(4):
                if wpos[n] == ks:
                    if n == 0 or wpos[n - 1] != ks or True:
                        if n == 0: gaps[0] = ["s_add_u32 m0, %s, %d" % (s(k2_sM), wslot * 16384)] + gaps[0]
                    gaps[0].append(k2_wdma(n))
            if PF and ks == o.get("k2pk", 5):
                gaps[0] += [k2_pf()]
                gaps[1] += ["s_add_u32 %s, %s, %s" % (s(k2_sPo), s(k2_sPo), s(k2_sPs))]
            ab = e.o.get("ablate", "").split("+")
            if ks == 7 and ("k2:s0" in ab or "k2:so" in ab or "k2:sw" in ab):
                if "k2:so" in ab: gaps[1] += ["s_add_u32 %s, %s, 131072" % (s(k2_sWo), s(k2_sWo))]
                if "k2:sw" in ab: gaps[1] += ["s_add_u32 %s, %s, 65536" % (s(k2_sOo), s(k2_sOo)), "s_add_u32 %s, %s, 65536" % (s(k2_sOo2), s(k2_sOo2))]
            elif ks == 7:
                gaps[1] += ["s_add_u32 %s, %s, 131072" % (s(k2_sWo), s(k2_sWo)),
                    "s_add_u32 %s, %s, 65536" % (s(k2_sOo), s(k2_sOo)), "s_add_u32 %s, %s, 65536" % (s(k2_sOo2), s(k2_sOo2))]
            e.phase = "k2"
            e.all(pre); weave(e, mf, gaps)
    e("s_sub_u32 %s, %s, 1" % (s(k2_sCnt), s(k2_sCnt)))
    e("s_cmp_lg_u32 %s, 0" % s(k2_sCnt))
    e("s_cbranch_scc1 L2_loop")
    stamp(e, "k2loop")
    e("s_waitcnt vmcnt(32) lgkmcnt(0)")
    e("s_nop 15")
    T = k2_A
    for nt in range(2):
        for j in range(8): e("v_cvt_pk_bf16_f32 %s, %s, %s" % (v(T + 8 * nt + j), v(k2_acc + 16 * nt + 2 * j), v(k2_acc + 16 * nt + 2 * j + 1)))
    for nt in range(2):
        for u in range(2): e("buffer_store_dwordx4 %s, %s, %s, 0 offen offset:%d" % (v(T + 8 * nt + 4 * u, 4), v(k2_vT + 4), s(k2_sOut, 4), nt * 64 + u * 32))
    stamp_write(e, 30, STAMP_OFF + (0x100000 if e.o.get("only") != "k2" else 0))
    e("L2_end:")
    e("s_endpgm")

def gen_full(solved, opts):
    e = Em(solved, opts)
    e(HDR.rstrip())
    e("; @launch kernel=%s_kernel grid=(256,1,1) block=(256,1,1) lds=163840" % NAME)
    e("; @launch kernel=oproj_kernel grid=(256,1,1) block=(256,1,1) lds=%d" % K2LDS)
    e('.amdgcn_target "amdgcn-amd-amdhsa--gfx950"')
    k1(e, NAME + "_kernel")
    k2(e, "oproj_kernel")
    desc(e, NAME + "_kernel", 512, 256)
    desc(e, "oproj_kernel", 512, 256)
    return e.text()
def gen_k2_only(solved, opts):
    e = Em(solved, opts)
    e(HDR.rstrip())
    e("; @launch grid=(256,1,1) block=(256,1,1) lds=%d" % K2LDS)
    e('.amdgcn_target "amdgcn-amd-amdhsa--gfx950"')
    k2(e, NAME + "_kernel")
    desc(e, NAME + "_kernel", 512, 256)
    return e.text()
```

```python
import re, sys
import numpy as np

U32 = np.uint32
FULL = (1 << 64) - 1
LANES = np.arange(64, dtype=np.int64)

class EmuError(Exception):
    pass

def f32(x):
    return x.view(np.float32)
def u32(x):
    return np.ascontiguousarray(x, dtype=np.float32).view(np.uint32)
def bf16_round(x):
    b = u32(x).astype(np.uint64)
    r = ((b + 0x7FFF + ((b >> 16) & 1)) >> 16).astype(np.uint32) & 0xFFFF
    nan = np.isnan(x)
    if nan.any():
        r = np.where(nan, np.uint32(0x7FC0), r)
    return r.astype(np.uint32)

class Mem:
    def __init__(self):
        self.bufs = []
    def add(self, name, arr):
        base = (len(self.bufs) + 1) << 36
        self.bufs.append((name, base, arr.view(np.uint8).reshape(-1)))
        return base
    def locate(self, addr, n):
        i = (addr >> 36) - 1
        if i < 0 or i >= len(self.bufs):
            raise EmuError("FAULT: address %x not in any buffer" % addr)
        name, base, arr = self.bufs[i]
        off = addr - base
        if off < 0 or off + n > arr.size:
            raise EmuError("FAULT: address %x+%d outside buffer %s" % (addr, n, name))
        return name, arr, off

REG_RE = re.compile(r"^(-?)(abs\()?([vas])(?:(\d+)|\[(\d+):(\d+)\])\)?$")
INL_F = {"0.5": 0.5, "-0.5": -0.5, "1.0": 1.0, "-1.0": -1.0, "2.0": 2.0, "-2.0": -2.0, "4.0": 4.0, "-4.0": -4.0}

class Op:
    __slots__ = ("k", "n", "cnt", "val", "neg", "abs")
    def __init__(self, k, n=0, cnt=1, val=0, neg=False, ab=False):
        self.k = k; self.n = n; self.cnt = cnt; self.val = val; self.neg = neg; self.abs = ab
    def regs(self):
        if self.k == "v": return [("v", self.n + i) for i in range(self.cnt)]
        if self.k == "s": return [("s", self.n + i) for i in range(self.cnt)]
        if self.k in ("vcc", "exec"): return [("s", self.k)]
        if self.k in ("m0",): return [("s", "m0")]
        return []

def parse_op(t):
    t = t.strip()
    m = REG_RE.match(t)
    if m:
        neg, ab, k, n, lo, hi = m.groups()
        if n is not None: lo = hi = int(n)
        else: lo = int(lo); hi = int(hi)
        if k == "a": k = "v"; lo += 256; hi += 256
        return Op(k, lo, hi - lo + 1, neg=bool(neg), ab=bool(ab))
    if t in ("vcc", "exec", "m0", "off", "scc"): return Op(t, cnt=2 if t in ("vcc", "exec") else 1)
    if t in ("vcc_lo", "vcc_hi", "exec_lo", "exec_hi"): return Op(t)
    if t in INL_F: return Op("c", val=int(u32(np.array([INL_F[t]]))[0]))
    try:
        v = int(t, 0)
    except ValueError:
        return Op("lbl", val=t)
    return Op("c", val=v & 0xFFFFFFFF)

class Ins:
    __slots__ = ("op", "ops", "mods", "text", "line", "nochk", "cls", "rd", "wr", "auto", "stamp", "pub", "pubsrc")

def parse_program(text):
    prog = []; labels = {}
    for ln, raw in enumerate(text.split("\n"), 1):
        line = raw.split(";", 1)
        com = line[1] if len(line) > 1 else ""
        s = line[0].strip()
        if not s or s.startswith("."): continue
        if s.endswith(":"):
            labels[s[:-1]] = len(prog); continue
        parts = s.split(None, 1)
        op = parts[0]; rest = parts[1] if len(parts) > 1 else ""
        I = Ins(); I.op = op; I.text = s; I.line = ln; I.nochk = "nochk" in com; I.mods = {}
        m2_ = re.search(r"stamp=(\S+)", com); I.stamp = m2_.group(1) if m2_ else None
        m_ = re.search(r"auto=(\S+)", com); I.auto = m_.group(1) if m_ else None
        m_ = re.search(r"pubsrc=(\S+)", com); I.pubsrc = m_.group(1) if m_ else None
        m_ = re.search(r"\bpub=(\S+)", com); I.pub = m_.group(1) if m_ else None
        if op == "s_waitcnt":
            for m in re.finditer(r"(vmcnt|lgkmcnt|expcnt)\((\d+)\)", rest): I.mods[m.group(1)] = int(m.group(2))
            I.ops = []
        else:
            toks = []; depth = 0; cur = ""
            for ch in rest:
                if ch in "[(": depth += 1
                if ch in "])": depth -= 1
                if ch == "," and depth == 0: toks.append(cur); cur = ""
                else: cur += ch
            if cur.strip(): toks.append(cur)
            ops = []
            for i, tk in enumerate(toks):
                w = tk.split()
                ops.append(parse_op(w[0]) if not w[0].startswith("hwreg") else Op("c", val=0))
                for md in w[1:]:
                    if ":" in md:
                        a, b = md.split(":", 1)
                        try: I.mods[a] = int(b, 0)
                        except ValueError: I.mods[a] = b
                    else: I.mods[md] = True
            I.ops = ops
        prog.append(I)
    return prog, labels

TRANS = {"v_exp_f32", "v_rcp_f32", "v_log_f32", "v_rsq_f32", "v_sqrt_f32"}

def classify(I):
    op = I.op; o = I.ops
    rd = []; wr = []
    def R(*xs):
        for x in xs: rd.extend(x.regs())
    def W(*xs):
        for x in xs: wr.extend(x.regs())
    if op.startswith("v_mfma"):
        cls = "mfma"; W(o[0]); R(o[1], o[2], o[3])
    elif op.startswith("v_cmp"):
        cls = "valu"; W(o[0]); R(*o[1:])
    elif op.startswith("v_permlane") and "swap" in op:
        cls = "valu"; W(o[0], o[1]); R(o[0], o[1])
    elif op.startswith("v_"):
        cls = "valu"; W(o[0]); R(*o[1:])
        if op in ("v_fmac_f32",): R(o[0])
        if op.startswith("v_cndmask") and len(o) == 3: rd.append(("s", "vcc"))
    elif op.startswith("ds_read"):
        cls = "ds"; W(o[0]); R(o[1])
    elif op.startswith("ds_write"):
        cls = "ds"; R(*o)
    elif op.startswith("buffer_load"):
        cls = "vmem"
        if "lds" in I.mods: R(*o); rd.append(("s", "m0"))
        else: W(o[0]); R(*o[1:])
    elif op.startswith("buffer_store") or op.startswith("global_store") or op.startswith("global_atomic") :
        cls = "vmem"; R(*o)
    elif op.startswith("buffer_wbl2") or op.startswith("buffer_inv"):
        cls = "vmem"
    elif op.startswith("global_load"):
        cls = "vmem"; W(o[0]); R(*o[1:])
    elif op.startswith("s_load") or op in ("s_memtime", "s_memrealtime"):
        cls = "smem"; W(o[0]); R(*o[1:])
    elif op in ("s_waitcnt", "s_barrier", "s_nop", "s_endpgm", "s_setprio", "s_branch") or op.startswith("s_cbranch"):
        cls = "ctl"
    elif op.startswith("s_cmp") or op.startswith("s_bitcmp"):
        cls = "salu"; R(*o)
    elif op.startswith("s_"):
        cls = "salu"; W(o[0]); R(*o[1:])
        if op in ("s_addk_i32",): R(o[0])
        if "saveexec" in op: wr.append(("s", "exec")); rd.append(("s", "exec"))
    else:
        raise EmuError("unknown op %s (line %d)" % (op, I.line))
    I.cls = cls; I.rd = rd; I.wr = wr

class Wave:
    def __init__(self, wg, wid):
        self.wg = wg; self.wid = wid
        self.v = np.full((512, 64), 0x7FC0DEAD, dtype=np.uint32)
        self.s = [0xDEAD0000 + i for i in range(128)]
        self.vcc = 0; self.exec = FULL; self.scc = 0; self.m0 = 0
        self.pc = 0; self.done = False; self.at_barrier = False
        self.vmq = []; self.lgq = []
        self.pend = {}
        self.t = 0
        self.valu_w = {}; self.trans_w = {}; self.mfma_w = {}; self.mfma_c = {}; self.valu_sw = {}; self.store_d = {}
        self.m0_t = -100
        self.nins = 0; self.nmfma = 0
        self.swritten = set()
        self.vm_n = 0; self.lg_n = 0
        self.vm_ev = []; self.lg_ev = []

class WG:
    def __init__(self, prog, labels, mem, kernarg_addr, wgid, nwaves=4, lds_bytes=163840, entry=0, verbose=False):
        self.prog = prog; self.labels = labels; self.mem = mem
        self.lds_bytes = lds_bytes
        n = lds_bytes // 4
        self.lds = np.full(n, 0x7FC1BEEF, dtype=np.uint32)
        self.pend_w = np.zeros(n, dtype=np.int32)
        self.wr_wave = np.full(n, -1, dtype=np.int8)
        self.ready = np.zeros(n, dtype=np.int32)
        self.rd_pend = np.zeros((nwaves, n), dtype=np.int32)
        self.rd_epoch = np.full((nwaves, n), -1, dtype=np.int32)
        self.epoch = 0
        self.solve = None
        self.pw_idx = np.full(n, -1, dtype=np.int32); self.pw_wave = np.full(n, -1, dtype=np.int8); self.pw_kind = np.zeros(n, dtype=np.int8)
        self.pr_idx = np.full((nwaves, n), -1, dtype=np.int32)
        self.waves = []
        self.errors = []; self.maxerr = 30
        self.bank_conf = {}
        self.trace = None; self.stamps = []
        self.pubs = {}
        for w in range(nwaves):
            W = Wave(self, w); W.pc = entry
            W.s[0] = kernarg_addr & 0xFFFFFFFF; W.s[1] = kernarg_addr >> 32; W.s[2] = wgid
            W.v[0] = np.arange(64, dtype=np.uint32) + 64 * w
            self.waves.append(W)
        for I in prog:
            classify(I)
    def err(self, W, I, msg):
        key = (I.line, msg.split(":")[0])
        if key in [e[0] for e in self.errors]: return
        self.errors.append((key, "wave%d line %d [%s]: %s" % (W.wid, I.line, I.text, msg)))
        print("EMU-ERR", self.errors[-1][1])
        if len(self.errors) >= self.maxerr: raise EmuError("too many errors")
    def sget(self, W, o, I=None):
        k = o.k
        if k == "c": return o.val
        if k == "s":
            if o.cnt == 1: return W.s[o.n]
            return W.s[o.n] | (W.s[o.n + 1] << 32)
        if k == "vcc": return W.vcc
        if k == "exec": return W.exec
        if k == "m0": return W.m0
        if k == "vcc_lo": return W.vcc & 0xFFFFFFFF
        if k == "exec_lo": return W.exec & 0xFFFFFFFF
        if k == "scc": return W.scc
        raise EmuError("sget %s" % k)
    def sget64(self, W, o):
        if o.k == "c":
            v = o.val
            if v & 0x80000000 and v >= 0xFFFFFFF0: v |= 0xFFFFFFFF00000000
            return v
        return self.sget(W, o)
    def sset(self, W, o, val):
        k = o.k
        if k == "s":
            W.s[o.n] = val & 0xFFFFFFFF
            if o.cnt == 2: W.s[o.n + 1] = (val >> 32) & 0xFFFFFFFF
        elif k == "vcc": W.vcc = val & FULL
        elif k == "exec": W.exec = val & FULL
        elif k == "m0": W.m0 = val & 0xFFFFFFFF; W.m0_t = W.t
        else: raise EmuError("sset %s" % k)
    def vget(self, W, o, i=0):
        if o.k == "v": x = W.v[o.n + i]
        else: x = np.full(64, self.sget(W, o) & 0xFFFFFFFF if not (o.k == "s" and o.cnt == 2) else W.s[o.n + i], dtype=np.uint32)
        return x
    def fget(self, W, o, i=0):
        x = f32(self.vget(W, o, i))
        if o.abs: x = np.abs(x)
        if o.neg: x = -x
        return x
    def vset(self, W, n, val):
        val = np.asarray(val).astype(np.uint32, copy=False)
        if W.exec == FULL: W.v[n] = val
        else:
            m = ((W.exec >> LANES.astype(object)) & 1).astype(bool) if False else self.mask(W.exec)
            W.v[n] = np.where(m, val, W.v[n])
    @staticmethod
    def mask(x):
        return np.array([(x >> i) & 1 for i in range(64)], dtype=bool)
    @staticmethod
    def tomask(b):
        r = 0
        for i in np.nonzero(b)[0]: r |= 1 << int(i)
        return r
    def hazards(self, W, I):
        t = W.t; cls = I.cls
        def need(tab, reg, n, what):
            e = tab.get(reg)
            if e is not None and t - e - 1 < n:
                self.err(W, I, "HAZARD %s: reg %s distance %d < %d" % (what, reg, t - e - 1, n))
        vr = [r for r in I.rd if r[0] == "v"]; vw = [r for r in I.wr if r[0] == "v"]
        sr = [r for r in I.rd if r[0] == "s"]
        for r in I.rd + I.wr:
            if r in W.pend and not I.nochk:
                if self.solve is not None:
                    kd, k = W.pend[r]; self.attribute(W, kd, k, False, I, W)
                if r in W.pend: self.err(W, I, "PENDING %s: reg %s still loading" % (W.pend[r], r))
        if cls == "mfma":
            passes = 8 if "32x32" in I.op else 4
            for r in vr: need(W.valu_w, r, 2, "valu->mfma")
            d0 = I.ops[0]; c = I.ops[3]
            for idx in (1, 2):
                for r in I.ops[idx].regs():
                    e = W.mfma_w.get(r)
                    if e and t - e[0] - 1 < (12 if e[1] == 8 else 8): self.err(W, I, "HAZARD mfmaD->mfmaAB: %s dist %d" % (r, t - e[0] - 1))
            if c.k == "v":
                for r in c.regs():
                    e = W.mfma_w.get(r)
                    if e:
                        exact = (e[2] == c.n and e[3] == c.cnt and e[1] == passes)
                        n = 0 if exact else (10 if e[1] == 8 else 6)
                        if t - e[0] - 1 < n: self.err(W, I, "HAZARD mfmaD->mfmaC overlap: %s dist %d" % (r, t - e[0] - 1))
            for r in d0.regs():
                e = W.mfma_w.get(r)
                if e and not (e[2] == d0.n and e[3] == d0.cnt and e[1] == passes):
                    n = (10 if e[1] == 8 else 6)
                    if t - e[0] - 1 < n: self.err(W, I, "HAZARD mfmaD WAW overlap: %s" % (r,))
            for r in d0.regs(): W.mfma_w[r] = (t, passes, d0.n, d0.cnt)
            if c.k == "v":
                for r in c.regs(): W.mfma_c[r] = (t, passes)
        else:
            if cls in ("valu", "ds", "vmem"):
                lst = vr + vw
                for r in lst:
                    e = W.mfma_w.get(r)
                    if e and t - e[0] - 1 < (12 if e[1] == 8 else 8):
                        self.err(W, I, "HAZARD mfmaD->%s: %s dist %d" % (cls, r, t - e[0] - 1))
            if cls == "valu":
                for r in vw:
                    e = W.mfma_c.get(r)
                    if e and t - e[0] - 1 < (7 if e[1] == 8 else 3): self.err(W, I, "HAZARD mfmaC WAR: %s dist %d" % (r, t - e[0] - 1))
                    need(W.store_d, r, 2, "store data WAR")
                if I.op not in TRANS:
                    for r in vr: need(W.trans_w, r, 1, "trans->use")
                if "permlane" in I.op:
                    for r in vr: need(W.valu_w, r, 2, "valu->permlane")
                if I.op.startswith("v_readfirstlane") or I.op.startswith("v_readlane"):
                    for r in vr: need(W.valu_w, r, 1, "valu->readlane")
                for r in sr: need(W.valu_sw, r, 2, "valu sgpr->valu read")
                for r in vw:
                    W.valu_w[r] = t
                    if I.op in TRANS: W.trans_w[r] = t
                    else: W.trans_w.pop(r, None)
                for r in I.wr:
                    if r[0] == "s": W.valu_sw[r] = t
            if cls == "vmem":
                for r in sr: need(W.valu_sw, r, 5, "valu sgpr->vmem")
                if "lds" in I.mods and t - W.m0_t - 1 < 1: self.err(W, I, "HAZARD m0->dma")
                for r in vw: need(W.store_d, r, 1, "store data WAR(load)")
                if ("store" in I.op) and ("x4" in I.op or "x3" in I.op):
                    d = I.ops[0] if I.op.startswith("buffer") else I.ops[1]
                    for r in d.regs(): W.store_d[r] = t
            if cls == "ds":
                for r in vw: need(W.store_d, r, 1, "store data WAR(ds)")
            if cls in ("salu", "ctl"):
                for r in sr: need(W.valu_sw, r, 4, "valu sgpr->salu (self-imposed)")
                if I.op in ("s_cbranch_vccz", "s_cbranch_vccnz"): need(W.valu_sw, ("s", "vcc"), 4, "valu vcc->branch (self-imposed)")
    def lds_read_check(self, W, I, g):
        if I.nochk: return
        if self.solve is not None: self.solve_pending_writes(W, I, g); self.solve_unseparated(W, I, g)
        if (self.pend_w[g] > 0).any():
            self.err(W, I, "RACE lds read of pending async write: addr %x" % (int(g[self.pend_w[g] > 0][0]) * 4))
        other = (self.wr_wave[g] != W.wid) & (self.wr_wave[g] >= 0)
        bad = other & (self.ready[g] > self.epoch)
        if bad.any(): self.err(W, I, "RACE lds read not barrier-separated from writer: addr %x" % (int(g[bad][0]) * 4))
    def lds_write_check(self, W, I, g):
        if I.nochk: return
        if self.solve is not None:
            self.solve_pending_writes(W, I, g); self.solve_unseparated(W, I, g)
            for w in range(len(self.waves)):
                m = self.rd_pend[w, g] > 0
                if m.any(): self.attribute(self.waves[w], "lg", int(self.pr_idx[w, g[m]].max()), w != W.wid, I, W)
        for w in range(len(self.waves)):
            if (self.rd_pend[w, g] > 0).any(): self.err(W, I, "RACE lds write over pending read by wave %d: addr %x" % (w, int(g[self.rd_pend[w, g] > 0][0]) * 4))
            if w != W.wid and (self.rd_epoch[w, g] >= self.epoch).any():
                self.err(W, I, "RACE lds write WAR vs wave %d read in same epoch: addr %x" % (w, int(g[self.rd_epoch[w, g] >= self.epoch][0]) * 4))
        if (self.pend_w[g] > 0).any(): self.err(W, I, "RACE lds WAW with pending write: addr %x" % (int(g[self.pend_w[g] > 0][0]) * 4))
        other = (self.wr_wave[g] != W.wid) & (self.wr_wave[g] >= 0)
        bad = other & (self.ready[g] > self.epoch)
        if bad.any(): self.err(W, I, "RACE lds WAW not barrier-separated: addr %x" % (int(g[bad][0]) * 4))
    B128_GROUPS = [list(range(0, 4)) + list(range(12, 16)) + list(range(20, 28)), list(range(4, 12)) + list(range(16, 20)) + list(range(28, 32))]
    B128_GROUPS += [[x + 32 for x in B128_GROUPS[0]], [x + 32 for x in B128_GROUPS[1]]]
    def bank_check(self, I, addr, nb):
        groups = self.B128_GROUPS if nb == 16 else ([list(range(32)), list(range(32, 64))] if nb == 8 else None)
        if groups is None: return
        extra = 0
        for g in groups:
            a = addr[g]
            dw = np.unique((a[:, None] // 4 + np.arange(nb // 4)[None, :]).reshape(-1))
            cnt = np.bincount(dw % 64, minlength=64)
            extra += cnt.max() - 1
        if extra: self.bank_conf[I.line] = (I.text, int(extra))
    def push_vm(self, W, e):
        W.vmq.append((W.vm_n, e)); W.vm_n += 1
        if self.solve is None and len(W.vmq) > 63: self.vm_over = max(getattr(self, "vm_over", 0), len(W.vmq))
    def push_lg(self, W, e):
        W.lgq.append((W.lg_n, e)); W.lg_n += 1
    def attribute(self, W, kind, k, cross, I, Wr):
        evs = W.vm_ev if kind == "vm" else W.lg_ev
        for (aid, ep, issued) in reversed(evs):
            if issued <= k: break
            if cross and ep >= self.epoch: continue
            n = issued - k - 1
            self.solve[aid] = min(self.solve.get(aid, 1000), n)
            q = W.vmq if kind == "vm" else W.lgq
            left = sum(1 for (i, _) in q if i > k)
            (self.retire_vm if kind == "vm" else self.retire_lg)(W, left, ep)
            return ep + 1
        self.err(Wr, I, "SOLVE no covering auto wait: %s op %d of wave %d" % (kind, k, W.wid))
        q = W.vmq if kind == "vm" else W.lgq
        (self.retire_vm if kind == "vm" else self.retire_lg)(W, sum(1 for (i, _) in q if i > k), self.epoch - 1)
        return self.epoch
    def solve_pending_writes(self, W, I, g):
        while True:
            m = self.pend_w[g] > 0
            if not m.any(): return
            gg = g[m]
            ww = int(self.pw_wave[gg[0]]); sel = gg[(self.pw_wave[gg] == ww) & (self.pw_kind[gg] == self.pw_kind[gg[0]])]
            k = int(self.pw_idx[sel].max())
            self.attribute(self.waves[ww], "vm" if self.pw_kind[gg[0]] == 0 else "lg", k, ww != W.wid, I, W)
    def solve_unseparated(self, W, I, g):
        while True:
            bad = (self.wr_wave[g] != W.wid) & (self.wr_wave[g] >= 0) & (self.ready[g] > self.epoch)
            if not bad.any(): return
            gg = g[bad]; ww = int(self.wr_wave[gg[0]]); sel = gg[self.wr_wave[gg] == ww]
            k = int(self.pw_idx[sel].max())
            r = self.attribute(self.waves[ww], "vm" if self.pw_kind[sel[0]] == 0 else "lg", k, True, I, W)
            self.ready[sel] = r
    def retire_vm(self, W, n, ep=None):
        if ep is None: ep = self.epoch
        while len(W.vmq) > n:
            e = W.vmq.pop(0)[1]
            if e[0] == "reg":
                _, r0, data, msk = e
                for i in range(data.shape[0]):
                    W.v[r0 + i] = data[i] if msk is None else np.where(msk, data[i], W.v[r0 + i]); W.pend.pop(("v", r0 + i), None)
            elif e[0] == "lds":
                _, g, data = e
                self.lds[g] = data; self.pend_w[g] -= 1; self.wr_wave[g] = W.wid; self.ready[g] = ep + 1
            elif e[0] == "st" and len(e) > 1:
                e[1][2] = ep
    def pub_src(self, W, I):
        rec = [W.wid, W.vm_n, None]
        self.pubs.setdefault(I.pubsrc, []).append(rec)
        self.push_vm(W, ("st", rec))
    def pub_check(self, W, I):
        recs = self.pubs.get(I.pub, [])
        if len(set(r[0] for r in recs)) != len(self.waves): self.err(W, I, "PUB %s: not every wave has issued its stores" % I.pub)
        for rec in recs:
            ww, k, ep = rec
            cross = ww != W.wid
            if self.solve is not None and (ep is None or (cross and ep >= self.epoch)):
                self.attribute(self.waves[ww], "vm", k, cross, I, W)
                q = [x for x in self.waves[ww].vm_ev if x[2] > k and (not cross or x[1] < self.epoch)]
                if q: rec[2] = q[-1][1]
                ep = rec[2]
            if ep is None or (cross and ep >= self.epoch):
                self.err(W, I, "PUB %s: store of wave %d not complete / not barrier separated" % (I.pub, ww))
        self.pubs[I.pub] = []
    def retire_lg(self, W, n, ep=None):
        if ep is None: ep = self.epoch
        if n > 0 and any(e[1][0] == "sreg" for e in W.lgq): raise EmuError("counted lgkmcnt with SMEM outstanding")
        while len(W.lgq) > n:
            e = W.lgq.pop(0)[1]
            if e[0] == "reg":
                _, r0, data, g = e
                for i in range(data.shape[0]):
                    W.v[r0 + i] = data[i]; W.pend.pop(("v", r0 + i), None)
                self.rd_pend[W.wid, g] -= 1; self.rd_epoch[W.wid, g] = ep
            elif e[0] == "sreg":
                _, r0, vals = e
                for i, x in enumerate(vals): W.s[r0 + i] = int(x); W.pend.pop(("s", r0 + i), None)
            elif e[0] == "w":
                _, g = e
                self.pend_w[g] -= 1; self.wr_wave[g] = W.wid; self.ready[g] = ep + 1
    def buf_addr(self, W, I, vo, srd, so):
        base = W.s[srd.n] | ((W.s[srd.n + 1] & 0xFFFF) << 32)
        if W.s[srd.n + 1] >> 16: raise EmuError("SRD stride/swizzle bits set: line %d" % I.line)
        if W.s[srd.n + 3] != 0x20000: raise EmuError("SRD word3 %x line %d" % (W.s[srd.n + 3], I.line))
        nrec = W.s[srd.n + 2]
        off = np.full(64, self.sget(W, so) + I.mods.get("offset", 0), dtype=np.int64)
        if "offen" in I.mods: off += W.v[vo.n].astype(np.int64)
        return base, nrec, off
    def gread(self, I, base, nrec, off, ndw, active):
        data = np.zeros((ndw, 64), dtype=np.uint32)
        inr = (off + 4 * ndw <= nrec) & active
        part = (off + 4 <= nrec) & ~inr & active
        if part.any(): raise EmuError("partially OOB access line %d" % I.line)
        if inr.any():
            lo = int(off[inr].min()); hi = int(off[inr].max()) + 4 * ndw
            name, arr, o0 = self.mem.locate(base + lo, hi - lo)
            if ((off[inr] & 3) != 0).any(): raise EmuError("unaligned")
            a32 = arr[: arr.size // 4 * 4].view(np.uint32)
            idx = (off[inr] + (o0 - lo)) // 4
            for i in range(ndw): data[i, inr] = a32[idx + i]
        return data
    def gwrite(self, I, base, nrec, off, data, active):
        ndw = data.shape[0]
        inr = (off + 4 * ndw <= nrec) & active
        if inr.any():
            lo = int(off[inr].min()); hi = int(off[inr].max()) + 4 * ndw
            name, arr, o0 = self.mem.locate(base + lo, hi - lo)
            if name not in ("out", "ws", "dbg"): raise EmuError("store to input buffer %s line %d" % (name, I.line))
            a32 = arr[: arr.size // 4 * 4].view(np.uint32)
            idx = (off[inr] + (o0 - lo)) // 4
            for i in range(ndw): a32[idx + i] = data[i, inr]
    def step(self, W):
        I = self.prog[W.pc]; W.pc += 1
        op = I.op; o = I.ops; cls = I.cls
        self.hazards(W, I)
        W.nins += 1
        if self.trace is not None and W.wid == 0: self.trace.append(I)
        if I.stamp and W.wid == 0: self.stamps.append(I.stamp)
        adv = 1
        if cls == "mfma":
            self.mfma(W, I); W.nmfma += 1
        elif cls == "valu": self.valu(W, I)
        elif cls == "salu": self.salu(W, I)
        elif cls == "ctl":
            if op == "s_waitcnt":
                if self.solve is not None and I.auto:
                    if "vmcnt" in I.mods: W.vm_ev.append((I.auto + ".vm", self.epoch, W.vm_n))
                    if "lgkmcnt" in I.mods: W.lg_ev.append((I.auto + ".lg", self.epoch, W.lg_n))
                else:
                    if "vmcnt" in I.mods: self.retire_vm(W, I.mods["vmcnt"])
                    if "lgkmcnt" in I.mods: self.retire_lg(W, I.mods["lgkmcnt"])
            elif op == "s_nop": adv = o[0].val + 1
            elif op == "s_barrier": W.at_barrier = True
            elif op == "s_endpgm":
                self.retire_vm(W, 0); self.retire_lg(W, 0); W.done = True
            elif op == "s_setprio": pass
            elif op == "s_branch": W.pc = self.labels[o[0].val]
            else:
                c = {"s_cbranch_scc0": W.scc == 0, "s_cbranch_scc1": W.scc == 1, "s_cbranch_vccz": W.vcc == 0, "s_cbranch_vccnz": W.vcc != 0,
                     "s_cbranch_execz": W.exec == 0, "s_cbranch_execnz": W.exec != 0}[op]
                if c: W.pc = self.labels[o[0].val]
        elif cls == "smem":
            if op.startswith("s_load"):
                base = self.sget(W, o[1]); off = self.sget(W, o[2]) if len(o) > 2 else 0
                off += I.mods.get("offset", 0)
                n = o[0].cnt
                name, arr, oo = self.mem.locate(base + off, 4 * n)
                vals = arr[oo: oo + 4 * n].view(np.uint32).copy()
            else: vals = np.array([W.nins, 0], dtype=np.uint32)
            self.push_lg(W, ("sreg", o[0].n, vals))
            for r in I.wr: W.pend[r] = ("lg", W.lg_n - 1)
        elif cls == "ds": self.ds(W, I)
        elif cls == "vmem": self.vmem(W, I)
        W.t += adv
    def mfma(self, W, I):
        o = I.ops
        if W.exec != FULL: raise EmuError("mfma with partial exec")
        def frag(x):
            r = W.v[x.n: x.n + 4]
            h = np.ascontiguousarray(r.T).view(np.uint16).reshape(64, 8)
            return (h.astype(np.uint32) << 16).view(np.float32)
        a = frag(o[1]); b = frag(o[2])
        with np.errstate(all="ignore"):
            if "32x32x16" in I.op:
                A = a.reshape(2, 32, 8).transpose(1, 0, 2).reshape(32, 16)
                B = b.reshape(2, 32, 8).transpose(1, 0, 2).reshape(32, 16)
                D = (A[:, None, :] * B[None, :, :]).sum(-1, dtype=np.float32) if (np.isnan(a).any() or np.isnan(b).any() or np.isinf(a).any() or np.isinf(b).any()) else A @ B.T
                Dm = D.reshape(4, 2, 4, 32).transpose(0, 2, 1, 3).reshape(16, 64)
                n = 16
            else:
                A = a.reshape(4, 16, 8).transpose(1, 0, 2).reshape(16, 32)
                B = b.reshape(4, 16, 8).transpose(1, 0, 2).reshape(16, 32)
                D = (A[:, None, :] * B[None, :, :]).sum(-1, dtype=np.float32)
                Dm = D.reshape(4, 4, 16).transpose(1, 0, 2).reshape(4, 64)
                n = 4
            c = o[3]
            if c.k == "v": C = f32(W.v[c.n: c.n + n])
            else: C = f32(np.full((n, 64), self.sget(W, c), dtype=np.uint32))
            W.v[o[0].n: o[0].n + n] = (Dm + C).astype(np.float32).view(np.uint32)
    def valu(self, W, I):
        op = I.op; o = I.ops
        if op.endswith("_e32") or op.endswith("_e64"): op = op[:-4]
        g = lambda i, j=0: self.vget(W, o[i], j)
        f = lambda i, j=0: self.fget(W, o[i], j)
        d = o[0].n
        with np.errstate(all="ignore"):
            if op == "v_exp_f32": self.vset(W, d, u32(np.exp2(f(1))))
            elif op == "v_add_f32": self.vset(W, d, u32(f(1) + f(2)))
            elif op == "v_cvt_pk_bf16_f32": self.vset(W, d, bf16_round(f(1)) | (bf16_round(f(2)) << 16))
            elif op in ("v_mov_b32", "v_accvgpr_write_b32", "v_accvgpr_read_b32", "v_accvgpr_mov_b32"): self.vset(W, d, g(1).copy())
            elif op == "v_sub_f32": self.vset(W, d, u32(f(1) - f(2)))
            elif op == "v_mul_f32": self.vset(W, d, u32(f(1) * f(2)))
            elif op == "v_fma_f32": self.vset(W, d, u32((f(1).astype(np.float64) * f(2) + f(3)).astype(np.float32)))
            elif op == "v_max_f32": self.vset(W, d, u32(np.fmax(f(1), f(2))))
            elif op == "v_max3_f32": self.vset(W, d, u32(np.fmax(np.fmax(f(1), f(2)), f(3))))
            elif op == "v_rcp_f32": self.vset(W, d, u32(np.float32(1.0) / f(1)))
            elif op == "v_pk_mul_f32":
                r0 = u32(f(1, 0) * f(2, 0)); r1 = u32(f(1, 1) * f(2, 1))
                if I.mods: raise EmuError("pk mods unsupported")
                self.vset(W, d, r0); self.vset(W, d + 1, r1)
            elif op == "v_add_u32": self.vset(W, d, g(1) + g(2))
            elif op == "v_sub_u32": self.vset(W, d, g(1) - g(2))
            elif op == "v_subrev_u32": self.vset(W, d, g(2) - g(1))
            elif op == "v_lshlrev_b32": self.vset(W, d, g(2) << (g(1) & 31))
            elif op == "v_lshrrev_b32": self.vset(W, d, g(2) >> (g(1) & 31))
            elif op == "v_and_b32": self.vset(W, d, g(1) & g(2))
            elif op == "v_or_b32": self.vset(W, d, g(1) | g(2))
            elif op == "v_xor_b32": self.vset(W, d, g(1) ^ g(2))
            elif op == "v_lshl_add_u32": self.vset(W, d, (g(1) << (g(2) & 31)) + g(3))
            elif op == "v_lshl_or_b32": self.vset(W, d, (g(1) << (g(2) & 31)) | g(3))
            elif op == "v_and_or_b32": self.vset(W, d, (g(1) & g(2)) | g(3))
            elif op == "v_add3_u32": self.vset(W, d, g(1) + g(2) + g(3))
            elif op == "v_or3_b32": self.vset(W, d, g(1) | g(2) | g(3))
            elif op == "v_add_lshl_u32": self.vset(W, d, (g(1) + g(2)) << (g(3) & 31))
            elif op == "v_bfe_u32": self.vset(W, d, (g(1) >> (g(2) & 31)) & ((np.uint32(1) << (g(3) & 31)) - np.uint32(1)))
            elif op in ("v_mul_u32_u24",): self.vset(W, d, ((g(1) & 0xFFFFFF).astype(np.uint64) * (g(2) & 0xFFFFFF)).astype(np.uint32))
            elif op == "v_mad_u32_u24": self.vset(W, d, ((g(1) & 0xFFFFFF).astype(np.uint64) * (g(2) & 0xFFFFFF) + g(3)).astype(np.uint32))
            elif op == "v_mul_lo_u32": self.vset(W, d, (g(1).astype(np.uint64) * g(2)).astype(np.uint32))
            elif op == "v_readfirstlane_b32":
                lane = 0 if W.exec else 0
                while W.exec and not (W.exec >> lane) & 1: lane += 1
                self.sset(W, o[0], int(g(1)[lane]))
            elif op == "v_writelane_b32":
                W.v[d][self.sget(W, o[2]) & 63] = self.sget(W, o[1]) & 0xFFFFFFFF
            elif op == "v_permlane32_swap_b32":
                a = W.v[o[0].n].copy(); b = W.v[o[1].n].copy()
                W.v[o[0].n][32:] = b[:32]; W.v[o[1].n][:32] = a[32:]
            elif op == "v_permlane16_swap_b32":
                a = W.v[o[0].n].copy(); b = W.v[o[1].n].copy()
                W.v[o[0].n][16:32] = b[0:16]; W.v[o[0].n][48:64] = b[32:48]
                W.v[o[1].n][0:16] = a[16:32]; W.v[o[1].n][32:48] = a[48:64]
            elif op.startswith("v_cmp_"):
                _, _, cond, ty = op.split("_")
                if ty == "f32":
                    a = f(1); b = f(2)
                    r = {"lt": a < b, "gt": a > b, "le": a <= b, "ge": a >= b, "eq": a == b, "u": np.isnan(a) | np.isnan(b), "o": ~(np.isnan(a) | np.isnan(b)),
                         "nge": ~(a >= b), "nle": ~(a <= b), "nlt": ~(a < b), "ngt": ~(a > b), "neq": ~(a == b), "lg": (a < b) | (a > b)}[cond]
                else:
                    a = g(1); b = g(2)
                    if ty == "i32": a = a.view(np.int32); b = b.view(np.int32)
                    r = {"lt": a < b, "gt": a > b, "le": a <= b, "ge": a >= b, "eq": a == b, "ne": a != b}[cond]
                self.sset(W, o[0], self.tomask(r) & W.exec)
            elif op == "v_cndmask_b32":
                m = self.mask(W.vcc if len(o) == 3 else self.sget(W, o[3]))
                self.vset(W, d, np.where(m, g(2), g(1)))
            else: raise EmuError("valu op %s" % op)
    def salu(self, W, I):
        op = I.op; o = I.ops
        S = lambda i: self.sget(W, o[i])
        S64 = lambda i: self.sget64(W, o[i])
        def sgn(x): return x - (1 << 32) if x & 0x80000000 else x
        if op == "s_mov_b32": self.sset(W, o[0], S(1))
        elif op == "s_mov_b64": self.sset(W, o[0], S64(1))
        elif op == "s_add_u32": r = S(1) + S(2); W.scc = r >> 32; self.sset(W, o[0], r)
        elif op == "s_addc_u32": r = S(1) + S(2) + W.scc; W.scc = r >> 32; self.sset(W, o[0], r)
        elif op == "s_add_i32": r = S(1) + S(2); self.sset(W, o[0], r); W.scc = 0
        elif op == "s_addk_i32": r = S(0) + sgn(S(1) if S(1) & 0x80000000 else (S(1) if S(1) < 0x8000 else S(1) - 0x10000)); self.sset(W, o[0], r)
        elif op == "s_sub_u32": r = S(1) - S(2); W.scc = 1 if r < 0 else 0; self.sset(W, o[0], r)
        elif op == "s_sub_i32": r = S(1) - S(2); self.sset(W, o[0], r); W.scc = 0
        elif op == "s_mul_i32": self.sset(W, o[0], S(1) * S(2))
        elif op == "s_lshl_b32": r = (S(1) << (S(2) & 31)) & 0xFFFFFFFF; W.scc = int(r != 0); self.sset(W, o[0], r)
        elif op == "s_lshr_b32": r = S(1) >> (S(2) & 31); W.scc = int(r != 0); self.sset(W, o[0], r)
        elif op == "s_lshl_b64": r = (S64(1) << (S(2) & 63)) & FULL; W.scc = int(r != 0); self.sset(W, o[0], r)
        elif op == "s_and_b32": r = S(1) & S(2); W.scc = int(r != 0); self.sset(W, o[0], r)
        elif op == "s_or_b32": r = S(1) | S(2); W.scc = int(r != 0); self.sset(W, o[0], r)
        elif op == "s_xor_b32": r = S(1) ^ S(2); W.scc = int(r != 0); self.sset(W, o[0], r)
        elif op == "s_and_b64": r = S64(1) & S64(2); W.scc = int(r != 0); self.sset(W, o[0], r)
        elif op == "s_or_b64": r = S64(1) | S64(2); W.scc = int(r != 0); self.sset(W, o[0], r)
        elif op == "s_xor_b64": r = S64(1) ^ S64(2); W.scc = int(r != 0); self.sset(W, o[0], r)
        elif op == "s_andn2_b32": r = S(1) & ~S(2) & 0xFFFFFFFF; W.scc = int(r != 0); self.sset(W, o[0], r)
        elif op == "s_andn2_b64": r = S64(1) & ~S64(2) & FULL; W.scc = int(r != 0); self.sset(W, o[0], r)
        elif op == "s_bfe_u32": x = S(2); r = (S(1) >> (x & 31)) & ((1 << ((x >> 16) & 127)) - 1); W.scc = int(r != 0); self.sset(W, o[0], r)
        elif op == "s_cselect_b32": self.sset(W, o[0], S(1) if W.scc else S(2))
        elif op == "s_cselect_b64": self.sset(W, o[0], S64(1) if W.scc else S64(2))
        elif op == "s_and_saveexec_b64": old = W.exec; W.exec = S64(1) & old; self.sset(W, o[0], old); W.scc = int(W.exec != 0)
        elif op == "s_getreg_b32": self.sset(W, o[0], 0)
        elif op.startswith("s_cmp_"):
            _, _, cond, ty = op.split("_")
            if ty == "u64": a = S64(0); b = S64(1)
            else:
                a = S(0); b = S(1)
                if ty == "i32": a = sgn(a); b = sgn(b)
            W.scc = int({"eq": a == b, "lg": a != b, "lt": a < b, "le": a <= b, "gt": a > b, "ge": a >= b}[cond])
        elif op == "s_bitcmp1_b32": W.scc = (S(0) >> (S(1) & 31)) & 1
        elif op == "s_bitcmp0_b32": W.scc = 1 - ((S(0) >> (S(1) & 31)) & 1)
        else: raise EmuError("salu op %s" % op)
    def ds(self, W, I):
        op = I.op; o = I.ops
        if W.exec != FULL and "tr" in op: raise EmuError("tr read with partial exec")
        off = I.mods.get("offset", 0)
        if op.startswith("ds_read"):
            addr = W.v[o[1].n].astype(np.int64) + off
            nb = {"ds_read_b128": 16, "ds_read_b64_tr_b16": 8, "ds_read_b64": 8, "ds_read_b32": 4}[op]
            if (addr + nb > self.lds_bytes).any() or (addr % min(nb, 8)).any(): raise EmuError("ds addr out of range/unaligned line %d: %x" % (I.line, addr.max()))
            if nb == 16 and (addr % 16).any(): raise EmuError("b128 unaligned")
            g = (addr[:, None] // 4 + np.arange(nb // 4)[None, :])
            gf = g.reshape(-1)
            self.lds_read_check(W, I, gf); self.bank_check(I, addr, nb)
            data = self.lds[g]
            if op == "ds_read_b64_tr_b16":
                h = np.ascontiguousarray(data).view(np.uint16).reshape(4, 4, 4, 4)
                res = h.transpose(0, 2, 3, 1).reshape(64, 4)
                data = np.ascontiguousarray(res).view(np.uint32).reshape(64, 2)
            gu = np.unique(gf)
            self.rd_pend[W.wid, gu] += 1
            self.pr_idx[W.wid, gu] = W.lg_n
            for r in I.wr: W.pend[r] = ("lg", W.lg_n)
            self.push_lg(W, ("reg", o[0].n, np.ascontiguousarray(data.T), gu))
        else:
            addr = W.v[o[0].n].astype(np.int64) + off
            n = o[1].cnt
            act = self.mask(W.exec)
            g = (addr[act][:, None] // 4 + np.arange(n)[None, :])
            if (g * 4 + 4 > self.lds_bytes).any(): raise EmuError("ds write out of range")
            gf = g.reshape(-1); gu = np.unique(gf)
            self.lds_write_check(W, I, gu)
            self.lds[g] = W.v[o[1].n: o[1].n + n].T[act]
            self.pend_w[gu] += 1
            self.pw_idx[gu] = W.lg_n; self.pw_wave[gu] = W.wid; self.pw_kind[gu] = 1
            self.push_lg(W, ("w", gu))
    def vmem(self, W, I):
        op = I.op; o = I.ops
        act = self.mask(W.exec) if W.exec != FULL else np.ones(64, dtype=bool)
        if op.startswith("buffer_wbl2") or op.startswith("buffer_inv"):
            self.push_vm(W, ("st",)); return
        if op == "global_store_byte":
            base = self.sget(W, o[2]); off = W.v[o[0].n].astype(np.int64) + I.mods.get("offset", 0)
            if I.pub: self.pub_check(W, I)
            for ln in np.nonzero(act)[0]:
                name, arr, oo = self.mem.locate(base + int(off[ln]), 1)
                if name not in ("out", "ws", "dbg"): raise EmuError("store to input")
                arr[oo] = int(W.v[o[1].n][ln]) & 255
            self.push_vm(W, ("st",)); return
        if op == "global_load_ubyte":
            base = self.sget(W, o[2]); off = W.v[o[1].n].astype(np.int64) + I.mods.get("offset", 0)
            data = np.zeros((1, 64), dtype=np.uint32)
            for ln in np.nonzero(act)[0]:
                name, arr, oo = self.mem.locate(base + int(off[ln]), 1); data[0, ln] = arr[oo]
            for r in I.wr: W.pend[r] = ("vm", W.vm_n)
            self.push_vm(W, ("reg", o[0].n, data, None if act.all() else act)); return
        ndw = {"dword": 1, "dwordx2": 2, "dwordx3": 3, "dwordx4": 4}[op.split("_")[-1]]
        if op.startswith("buffer_load"):
            if "lds" in I.mods:
                base, nrec, off = self.buf_addr(W, I, o[0], o[1], o[2])
                data = self.gread(I, base, nrec, off, ndw, act)
                la = (W.m0 & 0x3FFFC) + I.mods.get("offset", 0) + LANES * (4 * ndw)
                ok = la + 4 * ndw <= self.lds_bytes
                if not ok.all():
                    if ok.any(): raise EmuError("partially dropped DMA line %d" % I.line)
                    self.push_vm(W, ("st",)); return
                g = (la[:, None] // 4 + np.arange(ndw)[None, :]).reshape(-1)
                self.lds_write_check(W, I, g)
                self.pend_w[g] += 1
                self.pw_idx[g] = W.vm_n; self.pw_wave[g] = W.wid; self.pw_kind[g] = 0
                self.push_vm(W, ("lds", g, np.ascontiguousarray(data.T).reshape(-1)))
            else:
                base, nrec, off = self.buf_addr(W, I, o[1], o[2], o[3])
                data = self.gread(I, base, nrec, off, ndw, act)
                for r in I.wr: W.pend[r] = ("vm", W.vm_n)
                self.push_vm(W, ("reg", o[0].n, data, None if act.all() else act))
        elif op.startswith("buffer_store"):
            base, nrec, off = self.buf_addr(W, I, o[1], o[2], o[3])
            self.gwrite(I, base, nrec, off, W.v[o[0].n: o[0].n + ndw].copy(), act)
            if I.pubsrc: self.pub_src(W, I)
            else: self.push_vm(W, ("st",))
        elif op.startswith("global_store"):
            if o[2].k == "s":
                base = self.sget(W, o[2]); off = W.v[o[0].n].astype(np.int64) + I.mods.get("offset", 0)
            else: raise EmuError("global_store off-form unsupported")
            self.gwrite(I, base, 1 << 40, off, W.v[o[1].n: o[1].n + ndw].copy(), act)
            self.push_vm(W, ("st",))
        elif op.startswith("global_load"):
            base = self.sget(W, o[2]); off = W.v[o[1].n].astype(np.int64) + I.mods.get("offset", 0)
            data = self.gread(I, base, 1 << 40, off, ndw, act)
            for r in I.wr: W.pend[r] = ("vm", W.vm_n)
            self.push_vm(W, ("reg", o[0].n, data, None if act.all() else act))
        else: raise EmuError("vmem op %s" % op)
    def run(self, maxins=10_000_000):
        n = 0
        while True:
            alive = [W for W in self.waves if not W.done]
            if not alive: break
            for W in alive:
                while not W.done and not W.at_barrier:
                    try:
                        self.step(W)
                    except EmuError:
                        I = self.prog[W.pc - 1]
                        print("while executing wave %d line %d: %s" % (W.wid, I.line, I.text)); raise
                    n += 1
                    if n > maxins: raise EmuError("instruction limit")
            alive = [W for W in self.waves if not W.done]
            if alive and all(W.at_barrier for W in alive):
                if len(alive) != len(self.waves) and any(W.at_barrier for W in alive):
                    pass
                for W in alive: W.at_barrier = False
                self.epoch += 1
        return n
```

```python
import sys, json, os, importlib
sys.path.insert(0, "tools")
import numpy as np
gen2 = importlib.import_module(os.environ.get("GEN", "gen2"))
from run_emu import *
K = gen2.NAME + "_kernel"
PART = gen2.PART_OFF
def cons_decode(wg):
    xcd = wg & 7; idx = wg >> 3
    return "AB"[xcd >> 2], (xcd & 3) * 2 + (idx & 1), (idx >> 1) & 1, (idx >> 2) & 3, idx >> 4
def fill_o(world, br, b, seed=1):
    rng = np.random.default_rng(seed)
    base = ((0 if br == "A" else 1) * 8 + b) * 8 * 262144
    o = bf(rng.standard_normal((256, 4096), dtype=np.float32) * 0.003)
    w16 = world.ws.view(np.uint16)
    fr = o.reshape(8, 32, 32, 8, 2, 8).transpose(2, 0, 3, 4, 1, 5)
    w16[base // 2: base // 2 + fr.size] = fr.reshape(-1)
def read_o(world, br, b):
    return np.concatenate([world.o_from_ws(br, b, h) for h in range(32)], axis=1)
def prep(world, wg, seed):
    br, b, hp = k1_decode(wg)
    for h in (2 * hp, 2 * hp + 1): world.fill(br, b, h)
    cbr, b2, qh, n4, kh = cons_decode(wg)
    fill_o(world, cbr, b2, seed)
    world.dbg.view(np.uint8)[:] = 7
    world.out[:] = 0x7FC0
    rng = np.random.default_rng(seed + 100)
    slab = (rng.standard_normal(8192) * 1e-3).astype(np.float32)
    pw = wg ^ 128
    world.ws[PART // 4 + pw * 8192: PART // 4 + (pw + 1) * 8192] = slab.view(np.uint32)
    world.ws[PART // 4 + wg * 8192: PART // 4 + (wg + 1) * 8192] = 0x7FC00000
    return slab
def slab_to_mat(slab):
    m = np.zeros((128, 64), dtype=np.float32)
    sl = slab.reshape(4, 8, 64, 4)
    for w in range(4):
        for j in range(8):
            for i in range(4):
                r = 4 * j + i; nt = r >> 4; rr = r & 15; u = rr >> 3; e_ = rr & 7
                for h in range(2):
                    col = nt * 32 + u * 16 + h * 8 + e_
                    m[w * 32:(w + 1) * 32, col] = sl[w, j, h * 32:(h + 1) * 32, i]
    return m
def verify(world, wg, slab, opts):
    br, b, hp = k1_decode(wg)
    for h in (2 * hp, 2 * hp + 1):
        ref = world.ref_head(br, b, h); got = world.o_from_ws(br, b, h)[:240]
        err = np.abs(got - ref).max(); print("  head %d: max err %.4e" % (h, err)); assert err < 2e-4 * max(1.0, np.abs(ref).max() / 0.02)
    cbr, b2, qh, n4, kh = cons_decode(wg)
    O = read_o(world, cbr, b2); wo = fb(world.t[cbr + "wo"])
    x = opts.get("fx", 10); y = opts.get("fy", 0); fo = x - 8 + y
    full = [16 * kh + 2 * j for j in range(8 - y)] + [16 * kh + 2 * j + 1 for j in range(fo)]
    pfull = [16 * (1 - kh) + 2 * j for j in range(8 - y)] + [16 * (1 - kh) + 2 * j + 1 for j in range(fo)]
    rows = slice(qh * 128, qh * 128 + 128)
    own = n4 * 128 + kh * 64; oth = n4 * 128 + (1 - kh) * 64
    def part(heads, c0): return sum(O[rows, h * 128:(h + 1) * 128] @ wo[h * 128:(h + 1) * 128, c0:c0 + 64] for h in heads)
    exp_own = part([h for h in range(32) if h not in pfull], own) + slab_to_mat(slab)
    exp_oth = part(full, oth)
    got_oth = slab_to_mat(world.ws[PART // 4 + wg * 8192: PART // 4 + (wg + 1) * 8192].view(np.float32))
    e1 = np.abs(got_oth - exp_oth).max()
    c0 = (0 if cbr == "A" else 512) + own
    r1 = min(240, qh * 128 + 128)
    got = fb(world.out[b2])[qh * 128:r1, c0:c0 + 64]
    e2 = np.abs(got - exp_own[:r1 - qh * 128]).max()
    wr = (~np.isnan(fb(world.out))).sum()
    print("  partial err %.3e ; out err %.3e (max %.3e) ; written %d (expected %d) ; own flag %d" % (e1, e2, np.abs(exp_own).max(), wr, (r1 - qh * 128) * 64, world.dbg.view(np.uint8)[((0 if br == "A" else 1) * 8 + b) * 16 + hp]))
    assert e1 < 1e-6 + 1e-5 * np.abs(exp_oth).max() and e2 < 6e-3 * np.abs(exp_own).max() and wr == (r1 - qh * 128) * 64
if __name__ == "__main__":
    out = sys.argv[1]; opts = {}
    for kv in sys.argv[2:]:
        k, v_ = kv.split("="); opts[k] = int(v_) if v_.lstrip("-").isdigit() else v_
    o2 = dict(opts); o2.pop("ablate", None)
    scale = float(opts.get("scale", 1))
    world = World(scale=1.0)
    sol = {}
    wg0 = opts.get("wg", 5)
    prep(world, wg0, 1)
    run_wg(world, gen2.gen_fused({}, o2), wg0, K, solve=sol)
    txt = gen2.gen_fused(sol, o2)
    if scale != 1: world = World(scale=scale)
    stamps = None
    for wg in ([wg0] if not opts.get("more") else [wg0, 250, 129]):
        slab = prep(world, wg, 3 + wg)
        g = run_wg(world, txt, wg, K); assert not g.errors
        if stamps is None: stamps = g.stamps
        verify(world, wg, slab, opts)
    txt = gen2.gen_fused(sol, opts)
    open(out, "w").write(txt)
    if opts.get("stamps"): json.dump(stamps, open(out[:-2] + ".stamps.json", "w"))
    if opts.get("dump"): json.dump(sol, open(out[:-2] + ".sol.json", "w"), indent=0, sort_keys=True)
```

```python
import sys, json, os, importlib
sys.path.insert(0, "tools")
import numpy as np
gen2 = importlib.import_module(os.environ.get("GEN", "gen2"))
from run_emu import *
K = gen2.NAME + "_kernel"
PART = gen2.PART_OFF
def cons_decode(wg):
    xcd = wg & 7; idx = wg >> 3
    return "AB"[xcd >> 2], (xcd & 3) * 2 + (idx & 1), (idx >> 1) & 1, (idx >> 2) & 3, idx >> 4
def fill_o(world, br, b, seed=1):
    rng = np.random.default_rng(seed)
    base = ((0 if br == "A" else 1) * 8 + b) * 8 * 262144
    o = bf(rng.standard_normal((256, 4096), dtype=np.float32) * 0.003)
    w16 = world.ws.view(np.uint16)
    fr = o.reshape(8, 32, 32, 8, 2, 8).transpose(2, 0, 3, 4, 1, 5)
    w16[base // 2: base // 2 + fr.size] = fr.reshape(-1)
def read_o(world, br, b):
    return np.concatenate([world.o_from_ws(br, b, h) for h in range(32)], axis=1)
def prep(world, wg, seed):
    br, b, hp = k1_decode(wg)
    for h in (2 * hp, 2 * hp + 1):
        fresh = (br, b, h) not in world.filled
        world.fill(br, b, h)
        if fresh and (h & 1) and getattr(world, "kscale1", 1) != 1: world.t[br + "k"][b, h] = bf(fb(world.t[br + "k"][b, h]) * world.kscale1)
    cbr, b2, qh, n4, kh = cons_decode(wg)
    fill_o(world, cbr, b2, seed)
    world.dbg.view(np.uint8)[:] = 7
    world.out[:] = 0x7FC0
    rng = np.random.default_rng(seed + 100)
    slab = (rng.standard_normal(8192) * 1e-3).astype(np.float32)
    pw = wg ^ 128
    world.ws[PART // 4 + pw * 8192: PART // 4 + (pw + 1) * 8192] = slab.view(np.uint32)
    world.ws[PART // 4 + wg * 8192: PART // 4 + (wg + 1) * 8192] = 0x7FC00000
    return slab
def slab_to_mat(slab):
    m = np.zeros((128, 64), dtype=np.float32)
    sl = slab.reshape(4, 8, 64, 4)
    for w in range(4):
        for j in range(8):
            for i in range(4):
                r = 4 * j + i; nt = r >> 4; rr = r & 15; u = rr >> 3; e_ = rr & 7
                for h in range(2):
                    col = nt * 32 + u * 16 + h * 8 + e_
                    m[w * 32:(w + 1) * 32, col] = sl[w, j, h * 32:(h + 1) * 32, i]
    return m
def verify(world, wg, slab, opts):
    br, b, hp = k1_decode(wg)
    for h in (2 * hp, 2 * hp + 1):
        ref = world.ref_head(br, b, h); got = world.o_from_ws(br, b, h)[:240]
        if float(opts.get("scale", 1)) != 1:
            q = fb(world.t[br + "x"][b]) @ fb(world.t[br + "wq"][:, h * 128:(h + 1) * 128])
            q = fb(bf(q * np.float32(gen2.CSCALE)))
            sc = q.astype(np.float64) @ fb(world.t[br + "k"][b, h]).T.astype(np.float64)
            print("  score range %.1f .. %.1f" % (sc.max(-1).min(), sc.max(-1).max()))
            p_ = np.exp2(sc - sc.max(-1, keepdims=True)); ref = ((p_ @ fb(world.t[br + "v"][b, h])) / p_.sum(-1, keepdims=True)).astype(np.float32)
            err = np.abs(got - ref); print("  head %d: max err %.4e  rms err %.3e  max|ref| %.3e" % (h, err.max(), np.sqrt((err ** 2).mean()), np.abs(ref).max()))
            assert np.sqrt((err ** 2).mean()) < 1e-3 and np.isfinite(got).all()
            continue
        err = np.abs(got - ref).max(); print("  head %d: max err %.4e" % (h, err)); assert err < 2e-4 * max(1.0, np.abs(ref).max() / 0.02)
    cbr, b2, qh, n4, kh = cons_decode(wg)
    O = read_o(world, cbr, b2); wo = fb(world.t[cbr + "wo"])
    x = opts.get("fx", 10); y = opts.get("fy", 0); fo = x - 8 + y
    full = [16 * kh + 2 * j for j in range(8 - y)] + [16 * kh + 2 * j + 1 for j in range(fo)]
    pfull = [16 * (1 - kh) + 2 * j for j in range(8 - y)] + [16 * (1 - kh) + 2 * j + 1 for j in range(fo)]
    rows = slice(qh * 128, qh * 128 + 128)
    own = n4 * 128 + kh * 64; oth = n4 * 128 + (1 - kh) * 64
    def part(heads, c0): return sum(O[rows, h * 128:(h + 1) * 128] @ wo[h * 128:(h + 1) * 128, c0:c0 + 64] for h in heads)
    exp_own = part([h for h in range(32) if h not in pfull], own) + slab_to_mat(slab)
    exp_oth = part(full, oth)
    got_oth = slab_to_mat(world.ws[PART // 4 + wg * 8192: PART // 4 + (wg + 1) * 8192].view(np.float32))
    e1 = np.abs(got_oth - exp_oth).max()
    c0 = (0 if cbr == "A" else 512) + own
    r1 = min(240, qh * 128 + 128)
    got = fb(world.out[b2])[qh * 128:r1, c0:c0 + 64]
    e2 = np.abs(got - exp_own[:r1 - qh * 128]).max()
    wr = (~np.isnan(fb(world.out))).sum()
    print("  partial err %.3e ; out err %.3e (max %.3e) ; written %d (expected %d) ; own flag %d" % (e1, e2, np.abs(exp_own).max(), wr, (r1 - qh * 128) * 64, world.dbg.view(np.uint8)[((0 if br == "A" else 1) * 8 + b) * 16 + hp]))
    assert e1 < 1e-6 + 1e-5 * np.abs(exp_oth).max() and e2 < 6e-3 * np.abs(exp_own).max() and wr == (r1 - qh * 128) * 64
if __name__ == "__main__":
    out = sys.argv[1]; opts = {}
    for kv in sys.argv[2:]:
        k, v_ = kv.split("="); opts[k] = int(v_) if v_.lstrip("-").isdigit() else v_
    o2 = dict(opts); o2.pop("ablate", None)
    scale = float(opts.get("scale", 1))
    world = World(scale=1.0)
    sol = {}
    wg0 = opts.get("wg", 5)
    prep(world, wg0, 1)
    run_wg(world, gen2.gen_fused({}, o2), wg0, K, solve=sol)
    txt = gen2.gen_fused(sol, o2)
    if scale != 1: world = World(scale=scale)
    if opts.get("kscale1"):
        world = World(scale=1.0); world.kscale1 = float(opts["kscale1"]); opts["scale"] = 1.0001
    stamps = None
    for wg in ([wg0] if not opts.get("more") else [wg0, 250, 129]):
        slab = prep(world, wg, 3 + wg)
        g = run_wg(world, txt, wg, K); assert not g.errors
        if stamps is None: stamps = g.stamps
        verify(world, wg, slab, opts)
    txt = gen2.gen_fused(sol, opts)
    open(out, "w").write(txt)
    if opts.get("stamps"): json.dump(stamps, open(out[:-2] + ".stamps.json", "w"))
    if opts.get("dump"): json.dump(sol, open(out[:-2] + ".sol.json", "w"), indent=0, sort_keys=True)
```

```python
import re, sys
import numpy as np

U32 = np.uint32
FULL = (1 << 64) - 1
LANES = np.arange(64, dtype=np.int64)

class EmuError(Exception):
    pass

def f32(x):
    return x.view(np.float32)
def u32(x):
    return np.ascontiguousarray(x, dtype=np.float32).view(np.uint32)
def bf16_round(x):
    b = u32(x).astype(np.uint64)
    r = ((b + 0x7FFF + ((b >> 16) & 1)) >> 16).astype(np.uint32) & 0xFFFF
    nan = np.isnan(x)
    if nan.any():
        r = np.where(nan, np.uint32(0x7FC0), r)
    return r.astype(np.uint32)

class Mem:
    def __init__(self):
        self.bufs = []
    def add(self, name, arr):
        base = (len(self.bufs) + 1) << 36
        self.bufs.append((name, base, arr.view(np.uint8).reshape(-1)))
        return base
    def locate(self, addr, n):
        i = (addr >> 36) - 1
        if i < 0 or i >= len(self.bufs):
            raise EmuError("FAULT: address %x not in any buffer" % addr)
        name, base, arr = self.bufs[i]
        off = addr - base
        if off < 0 or off + n > arr.size:
            raise EmuError("FAULT: address %x+%d outside buffer %s" % (addr, n, name))
        return name, arr, off

REG_RE = re.compile(r"^(-?)(abs\()?([vas])(?:(\d+)|\[(\d+):(\d+)\])\)?$")
INL_F = {"0.5": 0.5, "-0.5": -0.5, "1.0": 1.0, "-1.0": -1.0, "2.0": 2.0, "-2.0": -2.0, "4.0": 4.0, "-4.0": -4.0}

class Op:
    __slots__ = ("k", "n", "cnt", "val", "neg", "abs")
    def __init__(self, k, n=0, cnt=1, val=0, neg=False, ab=False):
        self.k = k; self.n = n; self.cnt = cnt; self.val = val; self.neg = neg; self.abs = ab
    def regs(self):
        if self.k == "v": return [("v", self.n + i) for i in range(self.cnt)]
        if self.k == "s": return [("s", self.n + i) for i in range(self.cnt)]
        if self.k in ("vcc", "exec"): return [("s", self.k)]
        if self.k in ("m0",): return [("s", "m0")]
        return []

def parse_op(t):
    t = t.strip()
    m = REG_RE.match(t)
    if m:
        neg, ab, k, n, lo, hi = m.groups()
        if n is not None: lo = hi = int(n)
        else: lo = int(lo); hi = int(hi)
        if k == "a": k = "v"; lo += 256; hi += 256
        return Op(k, lo, hi - lo + 1, neg=bool(neg), ab=bool(ab))
    if t in ("vcc", "exec", "m0", "off", "scc"): return Op(t, cnt=2 if t in ("vcc", "exec") else 1)
    if t in ("vcc_lo", "vcc_hi", "exec_lo", "exec_hi"): return Op(t)
    if t in INL_F: return Op("c", val=int(u32(np.array([INL_F[t]]))[0]))
    try:
        v = int(t, 0)
    except ValueError:
        return Op("lbl", val=t)
    return Op("c", val=v & 0xFFFFFFFF)

class Ins:
    __slots__ = ("op", "ops", "mods", "text", "line", "nochk", "cls", "rd", "wr", "auto", "stamp", "pub", "pubsrc")

def parse_program(text):
    prog = []; labels = {}
    for ln, raw in enumerate(text.split("\n"), 1):
        line = raw.split(";", 1)
        com = line[1] if len(line) > 1 else ""
        s = line[0].strip()
        if not s or s.startswith("."): continue
        if len(line) > 1 and "emuskip" in line[1]: continue
        if s.endswith(":"):
            labels[s[:-1]] = len(prog); continue
        parts = s.split(None, 1)
        op = parts[0]; rest = parts[1] if len(parts) > 1 else ""
        I = Ins(); I.op = op; I.text = s; I.line = ln; I.nochk = "nochk" in com; I.mods = {}
        if "codepf" in com: I.mods["codepf"] = True
        m2_ = re.search(r"stamp=(\S+)", com); I.stamp = m2_.group(1) if m2_ else None
        m_ = re.search(r"auto=(\S+)", com); I.auto = m_.group(1) if m_ else None
        m_ = re.search(r"pubsrc=(\S+)", com); I.pubsrc = m_.group(1) if m_ else None
        m_ = re.search(r"\bpub=(\S+)", com); I.pub = m_.group(1) if m_ else None
        if op == "s_waitcnt":
            for m in re.finditer(r"(vmcnt|lgkmcnt|expcnt)\((\d+)\)", rest): I.mods[m.group(1)] = int(m.group(2))
            I.ops = []
        else:
            toks = []; depth = 0; cur = ""
            for ch in rest:
                if ch in "[(": depth += 1
                if ch in "])": depth -= 1
                if ch == "," and depth == 0: toks.append(cur); cur = ""
                else: cur += ch
            if cur.strip(): toks.append(cur)
            ops = []
            for i, tk in enumerate(toks):
                w = tk.split()
                ops.append(parse_op(w[0]) if not w[0].startswith("hwreg") else Op("c", val=0))
                for md in w[1:]:
                    if ":" in md:
                        a, b = md.split(":", 1)
                        try: I.mods[a] = int(b, 0)
                        except ValueError: I.mods[a] = b
                    else: I.mods[md] = True
            I.ops = ops
        prog.append(I)
    return prog, labels

TRANS = {"v_exp_f32", "v_rcp_f32", "v_log_f32", "v_rsq_f32", "v_sqrt_f32"}

def classify(I):
    op = I.op; o = I.ops
    rd = []; wr = []
    def R(*xs):
        for x in xs: rd.extend(x.regs())
    def W(*xs):
        for x in xs: wr.extend(x.regs())
    if op.startswith("v_mfma"):
        cls = "mfma"; W(o[0]); R(o[1], o[2], o[3])
    elif op.startswith("v_cmp"):
        cls = "valu"; W(o[0]); R(*o[1:])
    elif op.startswith("v_permlane") and "swap" in op:
        cls = "valu"; W(o[0], o[1]); R(o[0], o[1])
    elif op.startswith("v_"):
        cls = "valu"; W(o[0]); R(*o[1:])
        if op in ("v_fmac_f32",): R(o[0])
        if op.startswith("v_cndmask") and len(o) == 3: rd.append(("s", "vcc"))
    elif op.startswith("ds_read"):
        cls = "ds"; W(o[0]); R(o[1])
    elif op.startswith("ds_write"):
        cls = "ds"; R(*o)
    elif op.startswith("buffer_load"):
        cls = "vmem"
        if "lds" in I.mods: R(*o); rd.append(("s", "m0"))
        else: W(o[0]); R(*o[1:])
    elif op.startswith("buffer_store") or op.startswith("global_store") or op.startswith("global_atomic") :
        cls = "vmem"; R(*o)
    elif op.startswith("buffer_wbl2") or op.startswith("buffer_inv"):
        cls = "vmem"
    elif op.startswith("global_load"):
        cls = "vmem"; W(o[0]); R(*o[1:])
    elif op.startswith("s_load") or op in ("s_memtime", "s_memrealtime"):
        cls = "smem"; W(o[0]); R(*o[1:])
    elif op in ("s_waitcnt", "s_barrier", "s_nop", "s_endpgm", "s_setprio", "s_branch") or op.startswith("s_cbranch"):
        cls = "ctl"
    elif op.startswith("s_cmp") or op.startswith("s_bitcmp"):
        cls = "salu"; R(*o)
    elif op.startswith("s_"):
        cls = "salu"; W(o[0]); R(*o[1:])
        if op in ("s_addk_i32",): R(o[0])
        if "saveexec" in op: wr.append(("s", "exec")); rd.append(("s", "exec"))
    else:
        raise EmuError("unknown op %s (line %d)" % (op, I.line))
    I.cls = cls; I.rd = rd; I.wr = wr

class Wave:
    def __init__(self, wg, wid):
        self.wg = wg; self.wid = wid
        self.v = np.full((512, 64), 0x7FC0DEAD, dtype=np.uint32)
        self.s = [0xDEAD0000 + i for i in range(128)]
        self.vcc = 0; self.exec = FULL; self.scc = 0; self.m0 = 0
        self.pc = 0; self.done = False; self.at_barrier = False
        self.vmq = []; self.lgq = []
        self.pend = {}
        self.t = 0
        self.valu_w = {}; self.trans_w = {}; self.mfma_w = {}; self.mfma_c = {}; self.valu_sw = {}; self.store_d = {}
        self.m0_t = -100
        self.nins = 0; self.nmfma = 0
        self.swritten = set()
        self.vm_n = 0; self.lg_n = 0
        self.vm_ev = []; self.lg_ev = []

class WG:
    def __init__(self, prog, labels, mem, kernarg_addr, wgid, nwaves=4, lds_bytes=163840, entry=0, verbose=False):
        self.prog = prog; self.labels = labels; self.mem = mem
        self.lds_bytes = lds_bytes
        n = lds_bytes // 4
        self.lds = np.full(n, 0x7FC1BEEF, dtype=np.uint32)
        self.pend_w = np.zeros(n, dtype=np.int32)
        self.wr_wave = np.full(n, -1, dtype=np.int8)
        self.ready = np.zeros(n, dtype=np.int32)
        self.rd_pend = np.zeros((nwaves, n), dtype=np.int32)
        self.rd_epoch = np.full((nwaves, n), -1, dtype=np.int32)
        self.epoch = 0
        self.solve = None
        self.pw_idx = np.full(n, -1, dtype=np.int32); self.pw_wave = np.full(n, -1, dtype=np.int8); self.pw_kind = np.zeros(n, dtype=np.int8)
        self.pr_idx = np.full((nwaves, n), -1, dtype=np.int32)
        self.waves = []
        self.errors = []; self.maxerr = 30
        self.bank_conf = {}
        self.trace = None; self.stamps = []
        self.pubs = {}
        for w in range(nwaves):
            W = Wave(self, w); W.pc = entry
            W.s[0] = kernarg_addr & 0xFFFFFFFF; W.s[1] = kernarg_addr >> 32; W.s[2] = wgid
            W.v[0] = np.arange(64, dtype=np.uint32) + 64 * w
            self.waves.append(W)
        for I in prog:
            classify(I)
    def err(self, W, I, msg):
        key = (I.line, msg.split(":")[0])
        if key in [e[0] for e in self.errors]: return
        self.errors.append((key, "wave%d line %d [%s]: %s" % (W.wid, I.line, I.text, msg)))
        print("EMU-ERR", self.errors[-1][1])
        if len(self.errors) >= self.maxerr: raise EmuError("too many errors")
    def sget(self, W, o, I=None):
        k = o.k
        if k == "c": return o.val
        if k == "s":
            if o.cnt == 1: return W.s[o.n]
            return W.s[o.n] | (W.s[o.n + 1] << 32)
        if k == "vcc": return W.vcc
        if k == "exec": return W.exec
        if k == "m0": return W.m0
        if k == "vcc_lo": return W.vcc & 0xFFFFFFFF
        if k == "exec_lo": return W.exec & 0xFFFFFFFF
        if k == "scc": return W.scc
        raise EmuError("sget %s" % k)
    def sget64(self, W, o):
        if o.k == "c":
            v = o.val
            if v & 0x80000000 and v >= 0xFFFFFFF0: v |= 0xFFFFFFFF00000000
            return v
        return self.sget(W, o)
    def sset(self, W, o, val):
        k = o.k
        if k == "s":
            W.s[o.n] = val & 0xFFFFFFFF
            if o.cnt == 2: W.s[o.n + 1] = (val >> 32) & 0xFFFFFFFF
        elif k == "vcc": W.vcc = val & FULL
        elif k == "exec": W.exec = val & FULL
        elif k == "m0": W.m0 = val & 0xFFFFFFFF; W.m0_t = W.t
        else: raise EmuError("sset %s" % k)
    def vget(self, W, o, i=0):
        if o.k == "v": x = W.v[o.n + i]
        else: x = np.full(64, self.sget(W, o) & 0xFFFFFFFF if not (o.k == "s" and o.cnt == 2) else W.s[o.n + i], dtype=np.uint32)
        return x
    def fget(self, W, o, i=0):
        x = f32(self.vget(W, o, i))
        if o.abs: x = np.abs(x)
        if o.neg: x = -x
        return x
    def vset(self, W, n, val):
        val = np.asarray(val).astype(np.uint32, copy=False)
        if W.exec == FULL: W.v[n] = val
        else:
            m = ((W.exec >> LANES.astype(object)) & 1).astype(bool) if False else self.mask(W.exec)
            W.v[n] = np.where(m, val, W.v[n])
    @staticmethod
    def mask(x):
        return np.array([(x >> i) & 1 for i in range(64)], dtype=bool)
    @staticmethod
    def tomask(b):
        r = 0
        for i in np.nonzero(b)[0]: r |= 1 << int(i)
        return r
    def hazards(self, W, I):
        t = W.t; cls = I.cls
        def need(tab, reg, n, what):
            e = tab.get(reg)
            if e is not None and t - e - 1 < n:
                self.err(W, I, "HAZARD %s: reg %s distance %d < %d" % (what, reg, t - e - 1, n))
        vr = [r for r in I.rd if r[0] == "v"]; vw = [r for r in I.wr if r[0] == "v"]
        sr = [r for r in I.rd if r[0] == "s"]
        for r in I.rd + I.wr:
            if r in W.pend and not I.nochk:
                if self.solve is not None:
                    kd, k = W.pend[r]; self.attribute(W, kd, k, False, I, W)
                if r in W.pend: self.err(W, I, "PENDING %s: reg %s still loading" % (W.pend[r], r))
        if cls == "mfma":
            passes = 8 if "32x32" in I.op else 4
            for r in vr: need(W.valu_w, r, 2, "valu->mfma")
            d0 = I.ops[0]; c = I.ops[3]
            for idx in (1, 2):
                for r in I.ops[idx].regs():
                    e = W.mfma_w.get(r)
                    if e and t - e[0] - 1 < (12 if e[1] == 8 else 8): self.err(W, I, "HAZARD mfmaD->mfmaAB: %s dist %d" % (r, t - e[0] - 1))
            if c.k == "v":
                for r in c.regs():
                    e = W.mfma_w.get(r)
                    if e:
                        exact = (e[2] == c.n and e[3] == c.cnt and e[1] == passes)
                        n = 0 if exact else (10 if e[1] == 8 else 6)
                        if t - e[0] - 1 < n: self.err(W, I, "HAZARD mfmaD->mfmaC overlap: %s dist %d" % (r, t - e[0] - 1))
            for r in d0.regs():
                e = W.mfma_w.get(r)
                if e and not (e[2] == d0.n and e[3] == d0.cnt and e[1] == passes):
                    n = (10 if e[1] == 8 else 6)
                    if t - e[0] - 1 < n: self.err(W, I, "HAZARD mfmaD WAW overlap: %s" % (r,))
            for r in d0.regs(): W.mfma_w[r] = (t, passes, d0.n, d0.cnt)
            if c.k == "v":
                for r in c.regs(): W.mfma_c[r] = (t, passes)
        else:
            if cls in ("valu", "ds", "vmem"):
                lst = vr + vw
                for r in lst:
                    e = W.mfma_w.get(r)
                    if e and t - e[0] - 1 < (12 if e[1] == 8 else 8):
                        self.err(W, I, "HAZARD mfmaD->%s: %s dist %d" % (cls, r, t - e[0] - 1))
            if cls == "valu":
                for r in vw:
                    e = W.mfma_c.get(r)
                    if e and t - e[0] - 1 < (7 if e[1] == 8 else 3): self.err(W, I, "HAZARD mfmaC WAR: %s dist %d" % (r, t - e[0] - 1))
                    need(W.store_d, r, 2, "store data WAR")
                if I.op not in TRANS:
                    for r in vr: need(W.trans_w, r, 1, "trans->use")
                if "permlane" in I.op:
                    for r in vr: need(W.valu_w, r, 2, "valu->permlane")
                if I.op.startswith("v_readfirstlane") or I.op.startswith("v_readlane"):
                    for r in vr: need(W.valu_w, r, 1, "valu->readlane")
                for r in sr: need(W.valu_sw, r, 2, "valu sgpr->valu read")
                for r in vw:
                    W.valu_w[r] = t
                    if I.op in TRANS: W.trans_w[r] = t
                    else: W.trans_w.pop(r, None)
                for r in I.wr:
                    if r[0] == "s": W.valu_sw[r] = t
            if cls == "vmem":
                for r in sr: need(W.valu_sw, r, 5, "valu sgpr->vmem")
                if "lds" in I.mods and t - W.m0_t - 1 < 1: self.err(W, I, "HAZARD m0->dma")
                for r in vw: need(W.store_d, r, 1, "store data WAR(load)")
                if ("store" in I.op) and ("x4" in I.op or "x3" in I.op):
                    d = I.ops[0] if I.op.startswith("buffer") else I.ops[1]
                    for r in d.regs(): W.store_d[r] = t
            if cls == "ds":
                for r in vw: need(W.store_d, r, 1, "store data WAR(ds)")
            if cls in ("salu", "ctl"):
                for r in sr: need(W.valu_sw, r, 4, "valu sgpr->salu (self-imposed)")
                if I.op in ("s_cbranch_vccz", "s_cbranch_vccnz"): need(W.valu_sw, ("s", "vcc"), 4, "valu vcc->branch (self-imposed)")
    def lds_read_check(self, W, I, g):
        if I.nochk: return
        if self.solve is not None: self.solve_pending_writes(W, I, g); self.solve_unseparated(W, I, g)
        if (self.pend_w[g] > 0).any():
            self.err(W, I, "RACE lds read of pending async write: addr %x" % (int(g[self.pend_w[g] > 0][0]) * 4))
        other = (self.wr_wave[g] != W.wid) & (self.wr_wave[g] >= 0)
        bad = other & (self.ready[g] > self.epoch)
        if bad.any(): self.err(W, I, "RACE lds read not barrier-separated from writer: addr %x" % (int(g[bad][0]) * 4))
    def lds_write_check(self, W, I, g):
        if I.nochk: return
        if self.solve is not None:
            self.solve_pending_writes(W, I, g); self.solve_unseparated(W, I, g)
            for w in range(len(self.waves)):
                m = self.rd_pend[w, g] > 0
                if m.any(): self.attribute(self.waves[w], "lg", int(self.pr_idx[w, g[m]].max()), w != W.wid, I, W)
        for w in range(len(self.waves)):
            if (self.rd_pend[w, g] > 0).any(): self.err(W, I, "RACE lds write over pending read by wave %d: addr %x" % (w, int(g[self.rd_pend[w, g] > 0][0]) * 4))
            if w != W.wid and (self.rd_epoch[w, g] >= self.epoch).any():
                self.err(W, I, "RACE lds write WAR vs wave %d read in same epoch: addr %x" % (w, int(g[self.rd_epoch[w, g] >= self.epoch][0]) * 4))
        if (self.pend_w[g] > 0).any(): self.err(W, I, "RACE lds WAW with pending write: addr %x" % (int(g[self.pend_w[g] > 0][0]) * 4))
        other = (self.wr_wave[g] != W.wid) & (self.wr_wave[g] >= 0)
        bad = other & (self.ready[g] > self.epoch)
        if bad.any(): self.err(W, I, "RACE lds WAW not barrier-separated: addr %x" % (int(g[bad][0]) * 4))
    B128_GROUPS = [list(range(0, 4)) + list(range(12, 16)) + list(range(20, 28)), list(range(4, 12)) + list(range(16, 20)) + list(range(28, 32))]
    B128_GROUPS += [[x + 32 for x in B128_GROUPS[0]], [x + 32 for x in B128_GROUPS[1]]]
    def bank_check(self, I, addr, nb):
        groups = self.B128_GROUPS if nb == 16 else ([list(range(32)), list(range(32, 64))] if nb == 8 else None)
        if groups is None: return
        extra = 0
        for g in groups:
            a = addr[g]
            dw = np.unique((a[:, None] // 4 + np.arange(nb // 4)[None, :]).reshape(-1))
            cnt = np.bincount(dw % 64, minlength=64)
            extra += cnt.max() - 1
        if extra: self.bank_conf[I.line] = (I.text, int(extra))
    def push_vm(self, W, e):
        W.vmq.append((W.vm_n, e)); W.vm_n += 1
        if self.solve is None and len(W.vmq) > 63: self.vm_over = max(getattr(self, "vm_over", 0), len(W.vmq))
    def push_lg(self, W, e):
        W.lgq.append((W.lg_n, e)); W.lg_n += 1
    def attribute(self, W, kind, k, cross, I, Wr):
        evs = W.vm_ev if kind == "vm" else W.lg_ev
        for (aid, ep, issued) in reversed(evs):
            if issued <= k: break
            if cross and ep >= self.epoch: continue
            n = issued - k - 1
            self.solve[aid] = min(self.solve.get(aid, 1000), n)
            q = W.vmq if kind == "vm" else W.lgq
            left = sum(1 for (i, _) in q if i > k)
            (self.retire_vm if kind == "vm" else self.retire_lg)(W, left, ep)
            return ep + 1
        self.err(Wr, I, "SOLVE no covering auto wait: %s op %d of wave %d" % (kind, k, W.wid))
        q = W.vmq if kind == "vm" else W.lgq
        (self.retire_vm if kind == "vm" else self.retire_lg)(W, sum(1 for (i, _) in q if i > k), self.epoch - 1)
        return self.epoch
    def solve_pending_writes(self, W, I, g):
        while True:
            m = self.pend_w[g] > 0
            if not m.any(): return
            gg = g[m]
            ww = int(self.pw_wave[gg[0]]); sel = gg[(self.pw_wave[gg] == ww) & (self.pw_kind[gg] == self.pw_kind[gg[0]])]
            k = int(self.pw_idx[sel].max())
            self.attribute(self.waves[ww], "vm" if self.pw_kind[gg[0]] == 0 else "lg", k, ww != W.wid, I, W)
    def solve_unseparated(self, W, I, g):
        while True:
            bad = (self.wr_wave[g] != W.wid) & (self.wr_wave[g] >= 0) & (self.ready[g] > self.epoch)
            if not bad.any(): return
            gg = g[bad]; ww = int(self.wr_wave[gg[0]]); sel = gg[self.wr_wave[gg] == ww]
            k = int(self.pw_idx[sel].max())
            r = self.attribute(self.waves[ww], "vm" if self.pw_kind[sel[0]] == 0 else "lg", k, True, I, W)
            self.ready[sel] = r
    def retire_vm(self, W, n, ep=None):
        if ep is None: ep = self.epoch
        while len(W.vmq) > n:
            e = W.vmq.pop(0)[1]
            if e[0] == "reg":
                _, r0, data, msk = e
                for i in range(data.shape[0]):
                    W.v[r0 + i] = data[i] if msk is None else np.where(msk, data[i], W.v[r0 + i]); W.pend.pop(("v", r0 + i), None)
            elif e[0] == "lds":
                _, g, data = e
                self.lds[g] = data; self.pend_w[g] -= 1; self.wr_wave[g] = W.wid; self.ready[g] = ep + 1
            elif e[0] == "st" and len(e) > 1:
                e[1][2] = ep
    def pub_src(self, W, I):
        rec = [W.wid, W.vm_n, None]
        self.pubs.setdefault(I.pubsrc, []).append(rec)
        self.push_vm(W, ("st", rec))
    def pub_check(self, W, I):
        recs = self.pubs.get(I.pub, [])
        if len(set(r[0] for r in recs)) != len(self.waves): self.err(W, I, "PUB %s: not every wave has issued its stores" % I.pub)
        for rec in recs:
            ww, k, ep = rec
            cross = ww != W.wid
            if self.solve is not None and (ep is None or (cross and ep >= self.epoch)):
                self.attribute(self.waves[ww], "vm", k, cross, I, W)
                q = [x for x in self.waves[ww].vm_ev if x[2] > k and (not cross or x[1] < self.epoch)]
                if q: rec[2] = q[-1][1]
                ep = rec[2]
            if ep is None or (cross and ep >= self.epoch):
                self.err(W, I, "PUB %s: store of wave %d not complete / not barrier separated" % (I.pub, ww))
        self.pubs[I.pub] = []
    def retire_lg(self, W, n, ep=None):
        if ep is None: ep = self.epoch
        if n > 0 and any(e[1][0] == "sreg" for e in W.lgq): raise EmuError("counted lgkmcnt with SMEM outstanding")
        while len(W.lgq) > n:
            e = W.lgq.pop(0)[1]
            if e[0] == "reg":
                _, r0, data, g = e
                for i in range(data.shape[0]):
                    W.v[r0 + i] = data[i]; W.pend.pop(("v", r0 + i), None)
                self.rd_pend[W.wid, g] -= 1; self.rd_epoch[W.wid, g] = ep
            elif e[0] == "sreg":
                _, r0, vals = e
                for i, x in enumerate(vals): W.s[r0 + i] = int(x); W.pend.pop(("s", r0 + i), None)
            elif e[0] == "w":
                _, g = e
                self.pend_w[g] -= 1; self.wr_wave[g] = W.wid; self.ready[g] = ep + 1
    def buf_addr(self, W, I, vo, srd, so):
        base = W.s[srd.n] | ((W.s[srd.n + 1] & 0xFFFF) << 32)
        if W.s[srd.n + 1] >> 16: raise EmuError("SRD stride/swizzle bits set: line %d" % I.line)
        if W.s[srd.n + 3] != 0x20000: raise EmuError("SRD word3 %x line %d" % (W.s[srd.n + 3], I.line))
        nrec = W.s[srd.n + 2]
        off = np.full(64, self.sget(W, so) + I.mods.get("offset", 0), dtype=np.int64)
        if "offen" in I.mods: off += W.v[vo.n].astype(np.int64)
        return base, nrec, off
    def gread(self, I, base, nrec, off, ndw, active):
        data = np.zeros((ndw, 64), dtype=np.uint32)
        inr = (off + 4 * ndw <= nrec) & active
        part = (off + 4 <= nrec) & ~inr & active
        if part.any(): raise EmuError("partially OOB access line %d" % I.line)
        if inr.any():
            lo = int(off[inr].min()); hi = int(off[inr].max()) + 4 * ndw
            name, arr, o0 = self.mem.locate(base + lo, hi - lo)
            if ((off[inr] & 3) != 0).any(): raise EmuError("unaligned")
            a32 = arr[: arr.size // 4 * 4].view(np.uint32)
            idx = (off[inr] + (o0 - lo)) // 4
            for i in range(ndw): data[i, inr] = a32[idx + i]
        return data
    def gwrite(self, I, base, nrec, off, data, active):
        ndw = data.shape[0]
        inr = (off + 4 * ndw <= nrec) & active
        if inr.any():
            lo = int(off[inr].min()); hi = int(off[inr].max()) + 4 * ndw
            name, arr, o0 = self.mem.locate(base + lo, hi - lo)
            if name not in ("out", "ws", "dbg"): raise EmuError("store to input buffer %s line %d" % (name, I.line))
            a32 = arr[: arr.size // 4 * 4].view(np.uint32)
            idx = (off[inr] + (o0 - lo)) // 4
            for i in range(ndw): a32[idx + i] = data[i, inr]
    def step(self, W):
        I = self.prog[W.pc]; W.pc += 1
        op = I.op; o = I.ops; cls = I.cls
        self.hazards(W, I)
        W.nins += 1
        if self.trace is not None and W.wid == 0: self.trace.append(I)
        if I.stamp and W.wid == 0: self.stamps.append(I.stamp)
        adv = 1
        if cls == "mfma":
            self.mfma(W, I); W.nmfma += 1
        elif cls == "valu": self.valu(W, I)
        elif cls == "salu": self.salu(W, I)
        elif cls == "ctl":
            if op == "s_waitcnt":
                if self.solve is not None and I.auto:
                    if "vmcnt" in I.mods: W.vm_ev.append((I.auto + ".vm", self.epoch, W.vm_n))
                    if "lgkmcnt" in I.mods: W.lg_ev.append((I.auto + ".lg", self.epoch, W.lg_n))
                else:
                    if "vmcnt" in I.mods: self.retire_vm(W, I.mods["vmcnt"])
                    if "lgkmcnt" in I.mods: self.retire_lg(W, I.mods["lgkmcnt"])
            elif op == "s_nop": adv = o[0].val + 1
            elif op == "s_barrier": W.at_barrier = True
            elif op == "s_endpgm":
                self.retire_vm(W, 0); self.retire_lg(W, 0); W.done = True
            elif op == "s_setprio": pass
            elif op == "s_branch": W.pc = self.labels[o[0].val]
            else:
                c = {"s_cbranch_scc0": W.scc == 0, "s_cbranch_scc1": W.scc == 1, "s_cbranch_vccz": W.vcc == 0, "s_cbranch_vccnz": W.vcc != 0,
                     "s_cbranch_execz": W.exec == 0, "s_cbranch_execnz": W.exec != 0}[op]
                if c: W.pc = self.labels[o[0].val]
        elif cls == "smem":
            if op.startswith("s_load"):
                base = self.sget(W, o[1]); off = self.sget(W, o[2]) if len(o) > 2 else 0
                off += I.mods.get("offset", 0)
                n = o[0].cnt
                name, arr, oo = self.mem.locate(base + off, 4 * n)
                vals = arr[oo: oo + 4 * n].view(np.uint32).copy()
            else: vals = np.array([W.nins, 0], dtype=np.uint32)
            self.push_lg(W, ("sreg", o[0].n, vals))
            for r in I.wr: W.pend[r] = ("lg", W.lg_n - 1)
        elif cls == "ds": self.ds(W, I)
        elif cls == "vmem": self.vmem(W, I)
        W.t += adv
    def mfma(self, W, I):
        o = I.ops
        if W.exec != FULL: raise EmuError("mfma with partial exec")
        def frag(x):
            r = W.v[x.n: x.n + 4]
            h = np.ascontiguousarray(r.T).view(np.uint16).reshape(64, 8)
            return (h.astype(np.uint32) << 16).view(np.float32)
        a = frag(o[1]); b = frag(o[2])
        with np.errstate(all="ignore"):
            if "32x32x16" in I.op:
                A = a.reshape(2, 32, 8).transpose(1, 0, 2).reshape(32, 16)
                B = b.reshape(2, 32, 8).transpose(1, 0, 2).reshape(32, 16)
                D = (A[:, None, :] * B[None, :, :]).sum(-1, dtype=np.float32) if (np.isnan(a).any() or np.isnan(b).any() or np.isinf(a).any() or np.isinf(b).any()) else A @ B.T
                Dm = D.reshape(4, 2, 4, 32).transpose(0, 2, 1, 3).reshape(16, 64)
                n = 16
            else:
                A = a.reshape(4, 16, 8).transpose(1, 0, 2).reshape(16, 32)
                B = b.reshape(4, 16, 8).transpose(1, 0, 2).reshape(16, 32)
                D = (A[:, None, :] * B[None, :, :]).sum(-1, dtype=np.float32)
                Dm = D.reshape(4, 4, 16).transpose(1, 0, 2).reshape(4, 64)
                n = 4
            c = o[3]
            if c.k == "v": C = f32(W.v[c.n: c.n + n])
            else: C = f32(np.full((n, 64), self.sget(W, c), dtype=np.uint32))
            W.v[o[0].n: o[0].n + n] = (Dm + C).astype(np.float32).view(np.uint32)
    def valu(self, W, I):
        op = I.op; o = I.ops
        if op.endswith("_e32") or op.endswith("_e64"): op = op[:-4]
        g = lambda i, j=0: self.vget(W, o[i], j)
        f = lambda i, j=0: self.fget(W, o[i], j)
        d = o[0].n
        with np.errstate(all="ignore"):
            if op == "v_exp_f32": self.vset(W, d, u32(np.exp2(f(1))))
            elif op == "v_add_f32": self.vset(W, d, u32(f(1) + f(2)))
            elif op == "v_cvt_pk_bf16_f32": self.vset(W, d, bf16_round(f(1)) | (bf16_round(f(2)) << 16))
            elif op in ("v_mov_b32", "v_accvgpr_write_b32", "v_accvgpr_read_b32", "v_accvgpr_mov_b32"): self.vset(W, d, g(1).copy())
            elif op == "v_sub_f32": self.vset(W, d, u32(f(1) - f(2)))
            elif op == "v_mul_f32": self.vset(W, d, u32(f(1) * f(2)))
            elif op == "v_fma_f32": self.vset(W, d, u32((f(1).astype(np.float64) * f(2) + f(3)).astype(np.float32)))
            elif op == "v_max_f32": self.vset(W, d, u32(np.fmax(f(1), f(2))))
            elif op == "v_max3_f32": self.vset(W, d, u32(np.fmax(np.fmax(f(1), f(2)), f(3))))
            elif op == "v_rcp_f32": self.vset(W, d, u32(np.float32(1.0) / f(1)))
            elif op == "v_pk_mul_f32":
                r0 = u32(f(1, 0) * f(2, 0)); r1 = u32(f(1, 1) * f(2, 1))
                if I.mods: raise EmuError("pk mods unsupported")
                self.vset(W, d, r0); self.vset(W, d + 1, r1)
            elif op == "v_add_u32": self.vset(W, d, g(1) + g(2))
            elif op == "v_sub_u32": self.vset(W, d, g(1) - g(2))
            elif op == "v_subrev_u32": self.vset(W, d, g(2) - g(1))
            elif op == "v_lshlrev_b32": self.vset(W, d, g(2) << (g(1) & 31))
            elif op == "v_lshrrev_b32": self.vset(W, d, g(2) >> (g(1) & 31))
            elif op == "v_and_b32": self.vset(W, d, g(1) & g(2))
            elif op == "v_or_b32": self.vset(W, d, g(1) | g(2))
            elif op == "v_xor_b32": self.vset(W, d, g(1) ^ g(2))
            elif op == "v_lshl_add_u32": self.vset(W, d, (g(1) << (g(2) & 31)) + g(3))
            elif op == "v_lshl_or_b32": self.vset(W, d, (g(1) << (g(2) & 31)) | g(3))
            elif op == "v_and_or_b32": self.vset(W, d, (g(1) & g(2)) | g(3))
            elif op == "v_add3_u32": self.vset(W, d, g(1) + g(2) + g(3))
            elif op == "v_or3_b32": self.vset(W, d, g(1) | g(2) | g(3))
            elif op == "v_add_lshl_u32": self.vset(W, d, (g(1) + g(2)) << (g(3) & 31))
            elif op == "v_bfe_u32": self.vset(W, d, (g(1) >> (g(2) & 31)) & ((np.uint32(1) << (g(3) & 31)) - np.uint32(1)))
            elif op in ("v_mul_u32_u24",): self.vset(W, d, ((g(1) & 0xFFFFFF).astype(np.uint64) * (g(2) & 0xFFFFFF)).astype(np.uint32))
            elif op == "v_mad_u32_u24": self.vset(W, d, ((g(1) & 0xFFFFFF).astype(np.uint64) * (g(2) & 0xFFFFFF) + g(3)).astype(np.uint32))
            elif op == "v_mul_lo_u32": self.vset(W, d, (g(1).astype(np.uint64) * g(2)).astype(np.uint32))
            elif op == "v_readfirstlane_b32":
                lane = 0 if W.exec else 0
                while W.exec and not (W.exec >> lane) & 1: lane += 1
                self.sset(W, o[0], int(g(1)[lane]))
            elif op == "v_writelane_b32":
                W.v[d][self.sget(W, o[2]) & 63] = self.sget(W, o[1]) & 0xFFFFFFFF
            elif op == "v_permlane32_swap_b32":
                a = W.v[o[0].n].copy(); b = W.v[o[1].n].copy()
                W.v[o[0].n][32:] = b[:32]; W.v[o[1].n][:32] = a[32:]
            elif op == "v_permlane16_swap_b32":
                a = W.v[o[0].n].copy(); b = W.v[o[1].n].copy()
                W.v[o[0].n][16:32] = b[0:16]; W.v[o[0].n][48:64] = b[32:48]
                W.v[o[1].n][0:16] = a[16:32]; W.v[o[1].n][32:48] = a[48:64]
            elif op.startswith("v_cmp_"):
                _, _, cond, ty = op.split("_")
                if ty == "f32":
                    a = f(1); b = f(2)
                    r = {"lt": a < b, "gt": a > b, "le": a <= b, "ge": a >= b, "eq": a == b, "u": np.isnan(a) | np.isnan(b), "o": ~(np.isnan(a) | np.isnan(b)),
                         "nge": ~(a >= b), "nle": ~(a <= b), "nlt": ~(a < b), "ngt": ~(a > b), "neq": ~(a == b), "lg": (a < b) | (a > b)}[cond]
                else:
                    a = g(1); b = g(2)
                    if ty == "i32": a = a.view(np.int32); b = b.view(np.int32)
                    r = {"lt": a < b, "gt": a > b, "le": a <= b, "ge": a >= b, "eq": a == b, "ne": a != b}[cond]
                self.sset(W, o[0], self.tomask(r) & W.exec)
            elif op == "v_cndmask_b32":
                m = self.mask(W.vcc if len(o) == 3 else self.sget(W, o[3]))
                self.vset(W, d, np.where(m, g(2), g(1)))
            else: raise EmuError("valu op %s" % op)
    def salu(self, W, I):
        op = I.op; o = I.ops
        S = lambda i: self.sget(W, o[i])
        S64 = lambda i: self.sget64(W, o[i])
        def sgn(x): return x - (1 << 32) if x & 0x80000000 else x
        if op == "s_mov_b32": self.sset(W, o[0], S(1))
        elif op == "s_mov_b64": self.sset(W, o[0], S64(1))
        elif op == "s_add_u32": r = S(1) + S(2); W.scc = r >> 32; self.sset(W, o[0], r)
        elif op == "s_addc_u32": r = S(1) + S(2) + W.scc; W.scc = r >> 32; self.sset(W, o[0], r)
        elif op == "s_add_i32": r = S(1) + S(2); self.sset(W, o[0], r); W.scc = 0
        elif op == "s_addk_i32": r = S(0) + sgn(S(1) if S(1) & 0x80000000 else (S(1) if S(1) < 0x8000 else S(1) - 0x10000)); self.sset(W, o[0], r)
        elif op == "s_sub_u32": r = S(1) - S(2); W.scc = 1 if r < 0 else 0; self.sset(W, o[0], r)
        elif op == "s_sub_i32": r = S(1) - S(2); self.sset(W, o[0], r); W.scc = 0
        elif op == "s_mul_i32": self.sset(W, o[0], S(1) * S(2))
        elif op == "s_lshl_b32": r = (S(1) << (S(2) & 31)) & 0xFFFFFFFF; W.scc = int(r != 0); self.sset(W, o[0], r)
        elif op == "s_lshr_b32": r = S(1) >> (S(2) & 31); W.scc = int(r != 0); self.sset(W, o[0], r)
        elif op == "s_lshl_b64": r = (S64(1) << (S(2) & 63)) & FULL; W.scc = int(r != 0); self.sset(W, o[0], r)
        elif op == "s_and_b32": r = S(1) & S(2); W.scc = int(r != 0); self.sset(W, o[0], r)
        elif op == "s_or_b32": r = S(1) | S(2); W.scc = int(r != 0); self.sset(W, o[0], r)
        elif op == "s_xor_b32": r = S(1) ^ S(2); W.scc = int(r != 0); self.sset(W, o[0], r)
        elif op == "s_and_b64": r = S64(1) & S64(2); W.scc = int(r != 0); self.sset(W, o[0], r)
        elif op == "s_or_b64": r = S64(1) | S64(2); W.scc = int(r != 0); self.sset(W, o[0], r)
        elif op == "s_xor_b64": r = S64(1) ^ S64(2); W.scc = int(r != 0); self.sset(W, o[0], r)
        elif op == "s_andn2_b32": r = S(1) & ~S(2) & 0xFFFFFFFF; W.scc = int(r != 0); self.sset(W, o[0], r)
        elif op == "s_andn2_b64": r = S64(1) & ~S64(2) & FULL; W.scc = int(r != 0); self.sset(W, o[0], r)
        elif op == "s_bfe_u32": x = S(2); r = (S(1) >> (x & 31)) & ((1 << ((x >> 16) & 127)) - 1); W.scc = int(r != 0); self.sset(W, o[0], r)
        elif op == "s_cselect_b32": self.sset(W, o[0], S(1) if W.scc else S(2))
        elif op == "s_cselect_b64": self.sset(W, o[0], S64(1) if W.scc else S64(2))
        elif op == "s_and_saveexec_b64": old = W.exec; W.exec = S64(1) & old; self.sset(W, o[0], old); W.scc = int(W.exec != 0)
        elif op == "s_getreg_b32": self.sset(W, o[0], 0)
        elif op.startswith("s_cmp_"):
            _, _, cond, ty = op.split("_")
            if ty == "u64": a = S64(0); b = S64(1)
            else:
                a = S(0); b = S(1)
                if ty == "i32": a = sgn(a); b = sgn(b)
            W.scc = int({"eq": a == b, "lg": a != b, "lt": a < b, "le": a <= b, "gt": a > b, "ge": a >= b}[cond])
        elif op == "s_bitcmp1_b32": W.scc = (S(0) >> (S(1) & 31)) & 1
        elif op == "s_bitcmp0_b32": W.scc = 1 - ((S(0) >> (S(1) & 31)) & 1)
        else: raise EmuError("salu op %s" % op)
    def ds(self, W, I):
        op = I.op; o = I.ops
        if W.exec != FULL and "tr" in op: raise EmuError("tr read with partial exec")
        off = I.mods.get("offset", 0)
        if op.startswith("ds_read"):
            addr = W.v[o[1].n].astype(np.int64) + off
            nb = {"ds_read_b128": 16, "ds_read_b64_tr_b16": 8, "ds_read_b64": 8, "ds_read_b32": 4}[op]
            if (addr + nb > self.lds_bytes).any() or (addr % min(nb, 8)).any(): raise EmuError("ds addr out of range/unaligned line %d: %x" % (I.line, addr.max()))
            if nb == 16 and (addr % 16).any(): raise EmuError("b128 unaligned")
            g = (addr[:, None] // 4 + np.arange(nb // 4)[None, :])
            gf = g.reshape(-1)
            self.lds_read_check(W, I, gf); self.bank_check(I, addr, nb)
            data = self.lds[g]
            if op == "ds_read_b64_tr_b16":
                h = np.ascontiguousarray(data).view(np.uint16).reshape(4, 4, 4, 4)
                res = h.transpose(0, 2, 3, 1).reshape(64, 4)
                data = np.ascontiguousarray(res).view(np.uint32).reshape(64, 2)
            gu = np.unique(gf)
            self.rd_pend[W.wid, gu] += 1
            self.pr_idx[W.wid, gu] = W.lg_n
            for r in I.wr: W.pend[r] = ("lg", W.lg_n)
            self.push_lg(W, ("reg", o[0].n, np.ascontiguousarray(data.T), gu))
        else:
            addr = W.v[o[0].n].astype(np.int64) + off
            n = o[1].cnt
            act = self.mask(W.exec)
            g = (addr[act][:, None] // 4 + np.arange(n)[None, :])
            if (g * 4 + 4 > self.lds_bytes).any(): raise EmuError("ds write out of range")
            gf = g.reshape(-1); gu = np.unique(gf)
            self.lds_write_check(W, I, gu)
            self.lds[g] = W.v[o[1].n: o[1].n + n].T[act]
            self.pend_w[gu] += 1
            self.pw_idx[gu] = W.lg_n; self.pw_wave[gu] = W.wid; self.pw_kind[gu] = 1
            self.push_lg(W, ("w", gu))
    def vmem(self, W, I):
        op = I.op; o = I.ops
        act = self.mask(W.exec) if W.exec != FULL else np.ones(64, dtype=bool)
        if op.startswith("buffer_wbl2") or op.startswith("buffer_inv") or "codepf" in I.mods:
            self.push_vm(W, ("st",)); return
        if op == "global_store_byte":
            base = self.sget(W, o[2]); off = W.v[o[0].n].astype(np.int64) + I.mods.get("offset", 0)
            if I.pub: self.pub_check(W, I)
            for ln in np.nonzero(act)[0]:
                name, arr, oo = self.mem.locate(base + int(off[ln]), 1)
                if name not in ("out", "ws", "dbg"): raise EmuError("store to input")
                arr[oo] = int(W.v[o[1].n][ln]) & 255
            self.push_vm(W, ("st",)); return
        if op == "global_load_ubyte":
            base = self.sget(W, o[2]); off = W.v[o[1].n].astype(np.int64) + I.mods.get("offset", 0)
            data = np.zeros((1, 64), dtype=np.uint32)
            for ln in np.nonzero(act)[0]:
                name, arr, oo = self.mem.locate(base + int(off[ln]), 1); data[0, ln] = arr[oo]
            for r in I.wr: W.pend[r] = ("vm", W.vm_n)
            self.push_vm(W, ("reg", o[0].n, data, None if act.all() else act)); return
        ndw = {"dword": 1, "dwordx2": 2, "dwordx3": 3, "dwordx4": 4}[op.split("_")[-1]]
        if op.startswith("buffer_load"):
            if "lds" in I.mods:
                base, nrec, off = self.buf_addr(W, I, o[0], o[1], o[2])
                data = self.gread(I, base, nrec, off, ndw, act)
                la = (W.m0 & 0x3FFFC) + I.mods.get("offset", 0) + LANES * (4 * ndw)
                ok = la + 4 * ndw <= self.lds_bytes
                if not ok.all():
                    if ok.any(): raise EmuError("partially dropped DMA line %d" % I.line)
                    self.push_vm(W, ("st",)); return
                g = (la[:, None] // 4 + np.arange(ndw)[None, :]).reshape(-1)
                self.lds_write_check(W, I, g)
                self.pend_w[g] += 1
                self.pw_idx[g] = W.vm_n; self.pw_wave[g] = W.wid; self.pw_kind[g] = 0
                self.push_vm(W, ("lds", g, np.ascontiguousarray(data.T).reshape(-1)))
            else:
                base, nrec, off = self.buf_addr(W, I, o[1], o[2], o[3])
                data = self.gread(I, base, nrec, off, ndw, act)
                for r in I.wr: W.pend[r] = ("vm", W.vm_n)
                self.push_vm(W, ("reg", o[0].n, data, None if act.all() else act))
        elif op.startswith("buffer_store"):
            base, nrec, off = self.buf_addr(W, I, o[1], o[2], o[3])
            self.gwrite(I, base, nrec, off, W.v[o[0].n: o[0].n + ndw].copy(), act)
            if I.pubsrc: self.pub_src(W, I)
            else: self.push_vm(W, ("st",))
        elif op.startswith("global_store"):
            if o[2].k == "s":
                base = self.sget(W, o[2]); off = W.v[o[0].n].astype(np.int64) + I.mods.get("offset", 0)
            else: raise EmuError("global_store off-form unsupported")
            if I.pub: self.pub_check(W, I)
            self.gwrite(I, base, 1 << 40, off, W.v[o[1].n: o[1].n + ndw].copy(), act)
            if I.pubsrc: self.pub_src(W, I)
            else: self.push_vm(W, ("st",))
        elif op.startswith("global_load"):
            base = self.sget(W, o[2]); off = W.v[o[1].n].astype(np.int64) + I.mods.get("offset", 0)
            data = self.gread(I, base, 1 << 40, off, ndw, act)
            for r in I.wr: W.pend[r] = ("vm", W.vm_n)
            self.push_vm(W, ("reg", o[0].n, data, None if act.all() else act))
        else: raise EmuError("vmem op %s" % op)
    def run(self, maxins=10_000_000):
        n = 0
        while True:
            alive = [W for W in self.waves if not W.done]
            if not alive: break
            for W in alive:
                while not W.done and not W.at_barrier:
                    try:
                        self.step(W)
                    except EmuError:
                        I = self.prog[W.pc - 1]
                        print("while executing wave %d line %d: %s" % (W.wid, I.line, I.text)); raise
                    n += 1
                    if n > maxins: raise EmuError("instruction limit")
            alive = [W for W in self.waves if not W.done]
            if alive and all(W.at_barrier for W in alive):
                if len(alive) != len(self.waves) and any(W.at_barrier for W in alive):
                    pass
                for W in alive: W.at_barrier = False
                self.epoch += 1
        return n
```

```python
import sys, json, os, importlib
sys.path.insert(0, "tools")
import numpy as np
gen2 = importlib.import_module(os.environ.get("GEN", "gen2"))
from run_emu import *
K = gen2.NAME + "_kernel"
PART = gen2.PART_OFF
def cons_decode(wg):
    br, b, hp = k1_decode(wg)
    return br, b, hp & 1, (hp >> 1) & 3, hp >> 3
def fill_o(world, br, b, seed=1):
    rng = np.random.default_rng(seed)
    base = ((0 if br == "A" else 1) * 8 + b) * 8 * 262144
    o = bf(rng.standard_normal((256, 4096), dtype=np.float32) * 0.003)
    w16 = world.ws.view(np.uint16)
    fr = o.reshape(8, 32, 32, 8, 2, 8).transpose(2, 0, 3, 4, 1, 5)
    w16[base // 2: base // 2 + fr.size] = fr.reshape(-1)
def read_o(world, br, b):
    return np.concatenate([world.o_from_ws(br, b, h) for h in range(32)], axis=1)
def prep(world, wg, seed):
    br, b, hp = k1_decode(wg)
    for h in (2 * hp, 2 * hp + 1):
        fresh = (br, b, h) not in world.filled
        world.fill(br, b, h)
        if fresh and (h & 1) and getattr(world, "kscale1", 1) != 1: world.t[br + "k"][b, h] = bf(fb(world.t[br + "k"][b, h]) * world.kscale1)
    cbr, b2, qh, n4, kh = cons_decode(wg)
    fill_o(world, cbr, b2, seed)
    if hasattr(world, "ocache"): del world.ocache
    world.dbg.view(np.uint8)[:] = 1
    world.dbg.view(np.uint8)[((0 if br == "A" else 1) * 8 + b) * 16 + hp] = 0
    world.ws[gen2.FLAG_OFF // 4: gen2.FLAG_OFF // 4 + 256 * 32: 32] = 7
    world.out[:] = 0x7FC0
    rng = np.random.default_rng(seed + 100)
    slab = (rng.standard_normal(8192) * 1e-3).astype(np.float32)
    pw = wg ^ 2
    world.ws[PART // 4 + pw * 8192: PART // 4 + (pw + 1) * 8192] = slab.view(np.uint32)
    world.ws[PART // 4 + wg * 8192: PART // 4 + (wg + 1) * 8192] = 0x7FC00000
    return slab
def slab_to_mat(slab):
    m = np.zeros((128, 64), dtype=np.float32)
    sl = slab.reshape(4, 8, 64, 4)
    for w in range(4):
        for j in range(8):
            for i in range(4):
                r = 4 * j + i; nt = r >> 4; rr = r & 15; u = rr >> 3; e_ = rr & 7
                for h in range(2):
                    col = nt * 32 + u * 16 + h * 8 + e_
                    m[w * 32:(w + 1) * 32, col] = sl[w, j, h * 32:(h + 1) * 32, i]
    return m
def verify(world, wg, slab, opts):
    br, b, hp = k1_decode(wg)
    for h in (2 * hp, 2 * hp + 1):
        ref = world.ref_head(br, b, h); got = world.o_from_ws(br, b, h)[:240]
        if float(opts.get("scale", 1)) != 1:
            q = fb(world.t[br + "x"][b]) @ fb(world.t[br + "wq"][:, h * 128:(h + 1) * 128])
            q = fb(bf(q * np.float32(gen2.CSCALE)))
            sc = q.astype(np.float64) @ fb(world.t[br + "k"][b, h]).T.astype(np.float64)
            print("  score range %.1f .. %.1f" % (sc.max(-1).min(), sc.max(-1).max()))
            p_ = np.exp2(sc - sc.max(-1, keepdims=True)); ref = ((p_ @ fb(world.t[br + "v"][b, h])) / p_.sum(-1, keepdims=True)).astype(np.float32)
            err = np.abs(got - ref); print("  head %d: max err %.4e  rms err %.3e  max|ref| %.3e" % (h, err.max(), np.sqrt((err ** 2).mean()), np.abs(ref).max()))
            assert np.sqrt((err ** 2).mean()) < 1e-3 and np.isfinite(got).all()
            continue
        err = np.abs(got - ref).max(); print("  head %d: max err %.4e" % (h, err)); assert err < 2e-4 * max(1.0, np.abs(ref).max() / 0.02)
    cbr, b2, qh, n4, kh = cons_decode(wg)
    O = read_o(world, cbr, b2); wo = fb(world.t[cbr + "wo"])
    full = list(range(16 * kh, 16 * kh + 16)); pfull = list(range(16 * (1 - kh), 16 * (1 - kh) + 16))
    rows = slice(qh * 128, qh * 128 + 128)
    own = n4 * 128 + kh * 64; oth = n4 * 128 + (1 - kh) * 64
    def part(heads, c0): return sum(O[rows, h * 128:(h + 1) * 128] @ wo[h * 128:(h + 1) * 128, c0:c0 + 64] for h in heads)
    exp_own = part([h for h in range(32) if h not in pfull], own) + slab_to_mat(slab)
    exp_oth = part(full, oth)
    got_oth = slab_to_mat(world.ws[PART // 4 + wg * 8192: PART // 4 + (wg + 1) * 8192].view(np.float32))
    e1 = np.abs(got_oth - exp_oth).max()
    c0 = (0 if cbr == "A" else 512) + own
    r1 = min(240, qh * 128 + 128)
    got = fb(world.out[b2])[qh * 128:r1, c0:c0 + 64]
    e2 = np.abs(got - exp_own[:r1 - qh * 128]).max()
    wr = (~np.isnan(fb(world.out))).sum()
    print("  partial err %.3e ; out err %.3e (max %.3e) ; written %d (expected %d) ; own flag %d" % (e1, e2, np.abs(exp_own).max(), wr, (r1 - qh * 128) * 64, world.ws[gen2.FLAG_OFF // 4 + (((0 if br == "A" else 1) * 8 + b) * 16 + hp) * 32]), "rdy", world.dbg.view(np.uint8)[((0 if br == "A" else 1) * 8 + b) * 16 + hp])
    assert e1 < 1e-6 + 1e-5 * np.abs(exp_oth).max() and e2 < 6e-3 * np.abs(exp_own).max() and wr == (r1 - qh * 128) * 64
if __name__ == "__main__":
    out = sys.argv[1]; opts = {}
    for kv in sys.argv[2:]:
        k, v_ = kv.split("="); opts[k] = int(v_) if v_.lstrip("-").isdigit() else (int(v_, 16) if v_.startswith("0x") else v_)
    o2 = dict(opts); o2.pop("ablate", None); o2.pop("wsoff", None)
    scale = float(opts.get("scale", 1))
    world = World(scale=1.0)
    sol = {}
    wg0 = opts.get("wg", 5)
    prep(world, wg0, 1)
    run_wg(world, gen2.gen_fused({}, o2), wg0, K, solve=sol)
    txt = gen2.gen_fused(sol, o2)
    if scale != 1: world = World(scale=scale)
    if opts.get("kscale1"):
        world = World(scale=1.0); world.kscale1 = float(opts["kscale1"]); opts["scale"] = 1.0001
    stamps = None
    for wg in ([wg0] if not opts.get("more") else [wg0, 250, 129]):
        slab = prep(world, wg, 3 + wg)
        g = run_wg(world, txt, wg, K); assert not g.errors
        if stamps is None: stamps = g.stamps
        verify(world, wg, slab, opts)
    txt = gen2.gen_fused(sol, opts)
    open(out, "w").write(txt)
    if opts.get("stamps"): json.dump(stamps, open(out[:-2] + ".stamps.json", "w"))
    if opts.get("dump"): json.dump(sol, open(out[:-2] + ".sol.json", "w"), indent=0, sort_keys=True)
```
